```python
import torch

def _softmax(x, axis=-1):
    return torch.softmax(x, dim=axis)

def _gelu(x):
    return torch.nn.functional.gelu(x, approximate='tanh')

def _silu(x):
    return torch.nn.functional.silu(x)

def _sigmoid(x):
    return torch.sigmoid(x)

def _layernorm(x, axis=-1, eps=1e-05):
    m = x.mean(dim=axis, keepdim=True)
    v = x.var(dim=axis, keepdim=True, unbiased=False)
    return (x - m) / torch.sqrt(v + eps)

def _scatter_add(tgt, idx, src, axis=0):
    return tgt.clone().index_add_(axis, idx, src)

def _segment_sum(src, seg, n):
    out = torch.zeros((n,) + src.shape[1:], dtype=src.dtype)
    return out.index_add_(0, seg, src)

def _pad(x, pw):
    flat = tuple((v for pair in reversed(pw) for v in pair))
    return torch.nn.functional.pad(x, flat)
kernel_name = 'concat_heads__memory_aug_recurrent_mem_tr__sliding_local_dilated__prompt'

def setup_inputs():

    _w = lambda a: (lambda t: t.to(torch.bfloat16) if t.is_floating_point() else t)(torch.as_tensor(a))

    def _A_setup():
        B, S, Dm = (1, 2048, 640)
        H, Dh = (32, 192)
        M, seg = (8, 32)
        seg = min(seg, S)
        S = S // seg * seg
        return {'x': _w((lambda *s: torch.randn(*s, dtype=torch.bfloat16) * 0.05)(B, S, Dm)), 'mem0': _w((lambda *s: torch.randn(*s, dtype=torch.bfloat16) * 1.6)(B, M, Dm)), 'Wq': _w((lambda *s: torch.randn(*s, dtype=torch.bfloat16) * 0.8)(Dm, H, Dh) * Dm ** (-0.5)), 'Wk': _w((lambda *s: torch.randn(*s, dtype=torch.bfloat16) * 0.8)(Dm, H, Dh) * Dm ** (-0.5)), 'Wv': _w((lambda *s: torch.randn(*s, dtype=torch.bfloat16) * 1.6)(Dm, H, Dh) * Dm ** (-0.5)), 'Wo': _w((lambda *s: torch.randn(*s, dtype=torch.bfloat16) * 1.6)(H, Dh, Dm) * (H * Dh) ** (-0.5)), 'seg_len': seg}
    _A_in = _A_setup()

    def _B_setup():
        B, S, D = (1, 2048, 640)
        return {'x': _w((lambda *s: torch.randn(*s, dtype=torch.bfloat16) * 0.2)(B, S, D)), 'wqkv': _w((lambda *s: torch.randn(*s, dtype=torch.bfloat16) * 0.2)(D, 3 * D)), 'wo': _w((lambda *s: torch.randn(*s, dtype=torch.bfloat16) * 0.05)(D, D))}
    _B_in = _B_setup()
    return {'A_x': _A_in['x'], 'A_mem0': _A_in['mem0'], 'A_Wq': _A_in['Wq'], 'A_Wk': _A_in['Wk'], 'A_Wv': _A_in['Wv'], 'A_Wo': _A_in['Wo'], 'A_seg_len': _A_in['seg_len'], 'B_x': _B_in['x'], 'B_wqkv': _B_in['wqkv'], 'B_wo': _B_in['wo']}

def reference(A_x, A_mem0, A_Wq, A_Wk, A_Wv, A_Wo, A_seg_len, B_x, B_wqkv, B_wo):

    def _A_ref(x, mem0, Wq, Wk, Wv, Wo, seg_len):
        B, S, Dm = x.shape
        H, Dh = (Wq.shape[1], Wq.shape[2])
        M = mem0.shape[1]
        scale = Dh ** (-0.5)
        n_seg = S // seg_len
        L = M + seg_len
        idx = torch.arange(L)
        mask = (idx[:, None] < M) | (idx[:, None] >= idx[None, :])
        mem = mem0
        outs = []
        for s in range(n_seg):
            xs = x[:, s * seg_len:(s + 1) * seg_len, :].clone()
            h = torch.concatenate([mem, xs], axis=1)
            q = torch.einsum('btd,dhe->bhte', h, Wq)
            k = torch.einsum('btd,dhe->bhte', h, Wk)
            v = torch.einsum('btd,dhe->bhte', h, Wv)
            scores = torch.einsum('bhqe,bhke->bhqk', q, k) * scale
            scores = torch.where(mask[None, None], scores, -1000000000.0)
            p = _softmax(scores, axis=-1)
            o = torch.einsum('bhqk,bhke->bhqe', p, v)
            o = torch.einsum('bhte,hed->btd', o, Wo)
            mem = o[:, :M, :].clone()
            outs.append(o[:, M:, :])
        return torch.concatenate(outs, axis=1)

    def _B_ref(x, wqkv, wo):
        B, S, D = x.shape
        H = 32
        Dh = D // H
        W, dil = (8, 2)
        qkv = (lambda x, *d: x.permute(*d))((x @ wqkv).reshape(B, S, 3, H, Dh), 2, 0, 3, 1, 4)
        q, k, v = (qkv[0], qkv[1], qkv[2])
        scale = Dh ** (-0.5)
        pos = torch.arange(S)
        off = torch.arange(W) * dil
        idx = pos[:, None] - off[None, :]
        mask = idx >= 0
        idx_c = torch.where(mask, idx, 0).reshape(-1)
        kg = k[:, :, idx_c, :].reshape(B, H, S, W, Dh)
        vg = v[:, :, idx_c, :].reshape(B, H, S, W, Dh)
        logits = torch.einsum('bhsd,bhswd->bhsw', q, kg) * scale
        logits = torch.where(mask[None, None, :, :], logits, -1000000000.0)
        attn = _softmax(logits, axis=-1)
        o = torch.einsum('bhsw,bhswd->bhsd', attn, vg)
        return (lambda x, *d: x.permute(*d))(o, 0, 2, 1, 3).reshape(B, S, D) @ wo
    a = _A_ref(A_x, A_mem0, A_Wq, A_Wk, A_Wv, A_Wo, A_seg_len)
    b = _B_ref(B_x, B_wqkv, B_wo)
    return torch.concatenate([a, b], axis=-1)
```

```python
import re

TRANS = ("v_exp_f32","v_log_f32","v_rcp_f32","v_rsq_f32","v_sqrt_f32","v_sin_f32","v_cos_f32","v_rcp_iflag_f32")
_reg_re = re.compile(r"^(-|\|)?(?:abs\()?([vas])(\d+)\)?\|?$")
_rng_re = re.compile(r"^(-|\|)?([vas])\[(\d+):(\d+)\]\|?$")

def regs_of(op):
    op = op.strip()
    m = _reg_re.match(op)
    if m: return {(m.group(2), int(m.group(3)))}
    m = _rng_re.match(op)
    if m: return {(m.group(2), i) for i in range(int(m.group(3)), int(m.group(4))+1)}
    if op == "vcc": return {("s","vcc_lo"),("s","vcc_hi")}
    if op in ("vcc_lo","vcc_hi"): return {("s",op)}
    if op == "exec": return {("x","exec")}
    if op in ("exec_lo","exec_hi"): return {("x","exec")}
    if op == "m0": return {("x","m0")}
    return set()

class Ins:
    __slots__ = ("text","op","ops","kind","dst","src","srcC","srcAB","passes","label","target","ws","dpp","wide","uncond")
    def __init__(self, text):
        self.text = text
        t = text.split(";")[0].strip()
        self.label = None; self.target=None; self.kind="other"; self.dst=set(); self.src=set()
        self.srcC=set(); self.srcAB=set(); self.passes=0; self.ws=1; self.dpp=False; self.wide=set(); self.uncond=False
        self.op=""; self.ops=[]
        if not t or t.startswith("."):
            self.kind="dir"; self.ws=0; return
        if t.endswith(":"):
            self.kind="label"; self.label=t[:-1]; self.ws=0; return
        parts = t.split(None,1)
        op = parts[0]; self.op=op
        rest = parts[1] if len(parts)>1 else ""
        ops=[]; cur=""; depth=0
        for ch in rest:
            if ch in "[(": depth+=1
            if ch in "])": depth-=1
            if ch=="," and depth==0: ops.append(cur.strip()); cur=""
            else: cur+=ch
        if cur.strip(): ops.append(cur.strip())
        mods=""
        if ops:
            last = ops[-1].split(None,1)
            ops[-1]=last[0]
            if len(last)>1: mods=last[1]
        self.ops=ops
        R=[regs_of(o) for o in ops]
        U=lambda l: set().union(*l) if l else set()
        if op=="s_nop":
            self.kind="nop"; self.ws=int(ops[0],0)+1
        elif op.startswith("s_cbranch") or op=="s_branch":
            self.kind="branch"; self.target=ops[0]; self.uncond=(op=="s_branch")
        elif op=="s_endpgm":
            self.kind="end"; self.uncond=True
        elif op.startswith("v_mfma") or op.startswith("v_smfmac"):
            self.kind="mfma"; self.dst=R[0]
            self.passes = 8 if "32x32" in op else (2 if "4x4" in op else 4)
            if op.startswith("v_smfmac"):
                self.srcC=R[0]; self.srcAB=R[1]|R[2]|R[3]
            else:
                self.srcC=R[3]; self.srcAB=R[1]|R[2]
            self.src=self.srcC|self.srcAB
        elif op.startswith("v_"):
            self.kind="valu"
            self.dpp = ("_dpp" in op) or ("row_" in mods) or ("quad_perm" in mods)
            if op.startswith("v_permlane") and "swap" in op:
                self.dst=R[0]|R[1]; self.src=R[0]|R[1]
            elif op.startswith("v_cmp"):
                self.dst=R[0]; self.src=U(R[1:])
                if op.startswith("v_cmpx"): self.dst=self.dst|{("x","exec")}
            elif re.match(r"v_(add|sub|subrev|addc|subb)_co", op) or op.startswith("v_mad_u64") or op.startswith("v_div_scale"):
                self.dst=R[0]|R[1]; self.src=U(R[2:])
            else:
                self.dst=R[0]; self.src=U(R[1:])
                if op.startswith(("v_fmac","v_dot2c","v_writelane")) or self.dpp: self.src=self.src|R[0]
        elif op.startswith("ds_"):
            self.kind="ds"
            if op.startswith(("ds_read","ds_bpermute","ds_permute","ds_swizzle")) or "_rtn" in op:
                self.dst=R[0]; self.src=U(R[1:])
            else: self.src=U(R)
        elif op.startswith(("global_","buffer_","flat_")):
            self.kind="vmem"
            lds = ("_lds_" in op) or re.search(r"\blds\b", mods) is not None
            if op.startswith(("buffer_inv","buffer_wbl2")): pass
            elif lds:
                self.src=U(R)|{("x","m0")}
            elif "load" in op:
                self.dst=R[0]; self.src=U(R[1:])
            elif "atomic" in op:
                if op.startswith("global_") and len(ops)==4: self.dst=R[0]; self.src=U(R[1:])
                else:
                    self.src=U(R)
                    if op.startswith("buffer_") and "sc0" in mods: self.dst=R[0]
            else:
                self.src=U(R)
                if "x3" in op or "x4" in op:
                    self.wide = R[1] if op.startswith("global_") else R[0]
        elif op.startswith("s_"):
            self.kind="salu"
            if op.startswith(("s_cmp","s_waitcnt","s_barrier","s_sleep","s_setprio","s_bitcmp","s_setreg")):
                self.src=U(R)
            else:
                self.dst=R[0] if R else set(); self.src=U(R[1:])
                if "saveexec" in op: self.dst=self.dst|{("x","exec")}

def isv(rs): return {r for r in rs if r[0] in "va"}
def iss(rs): return {r for r in rs if r[0]=="s"}

def need(p, c):
    n=0
    if p.kind=="valu":
        pv=isv(p.dst); ps=iss(p.dst)
        if c.kind=="mfma" and pv & c.src: n=max(n,2)
        if c.kind=="valu":
            if pv & c.src:
                if c.dpp: n=max(n,2)
                if c.op.startswith("v_permlane"): n=max(n,2)
                if c.op.startswith(("v_readlane","v_readfirstlane")): n=max(n,1)
                if p.op.startswith(TRANS) : n=max(n,1)
                if "sdwa" in p.op or ("op_sel" in p.text and not p.op.startswith("v_pk_")): n=max(n,1)
            if ps & c.src:
                n=max(n,4 if c.op.startswith(("v_readlane","v_writelane","v_div_fmas")) else 2)
            if c.op.startswith("v_div_fmas") and ("s","vcc_lo") in ps: n=max(n,4)
        if p.op.startswith("v_dot") and c.kind in ("valu","vmem","ds","mfma") and pv & (c.src|c.dst):
            if c.op!=p.op: n=max(n,3)
            elif pv & (regs_of(c.ops[1])|regs_of(c.ops[2])): n=max(n,3)
        if c.kind=="vmem" and ps & c.src: n=max(n,5)
        if c.kind=="salu" and ps & c.src: n=max(n,1)
        if ("x","exec") in p.dst:
            if c.kind=="mfma": n=max(n,4)
            if c.kind=="valu":
                if c.dpp: n=max(n,5)
                if c.op.startswith(("v_permlane","v_readlane","v_readfirstlane","v_writelane")): n=max(n,4)
    elif p.kind=="mfma":
        P={2:0,4:1,8:2}[p.passes]
        if c.kind=="mfma":
            if p.dst & c.srcC:
                if p.dst==c.srcC and p.passes==c.passes: n=max(n,[2,0,0][P])
                else: n=max(n,[4,6,10][P])
            if p.dst & c.srcAB: n=max(n,[5,8,12][P])
            if (p.dst & c.dst) and not (p.dst & c.srcC): n=max(n,[5,8,12][P])
        elif c.kind in ("valu","ds","vmem"):
            if p.dst & (c.src|c.dst): n=max(n,[5,8,12][P])
            if c.kind=="valu" and p.srcC & c.dst: n=max(n,[1,3,7][P])
    elif p.kind=="vmem":
        if p.wide and (p.wide & c.dst): n=max(n,2)
    elif p.kind=="salu":
        if ("x","m0") in p.dst and ("x","m0") in c.src and c.kind in ("vmem","ds"): n=max(n,1)
    return n

class Asm:
    def __init__(self):
        self.lines=[]; self.uid=0
    def __call__(self, text):
        for l in text.split("\n"):
            l=l.strip()
            if l: self.lines.append(l)
    def label(self, name): self.lines.append(name+":")
    def newlabel(self, base):
        self.uid+=1; return f"{base}_{self.uid}"
    def autolgkm(self):
        out=[]; on=False; pend=[]
        for l in self.lines:
            if l.startswith(";AUTOLGKM_ON"): on=True; pend=[]; continue
            if l.startswith(";AUTOLGKM_OFF"):
                assert not any(pend), "pending LDS reads at end of region"
                on=False; continue
            if on:
                c=Ins(l)
                if c.op=="s_waitcnt":
                    m=re.search(r"lgkmcnt\((\d+)\)", l)
                    if m:
                        n=int(m.group(1)); pend=pend[len(pend)-n:] if n>0 else []
                else:
                    assert not (c.op.startswith("s_load") or c.op.startswith("s_mem")) or not any(pend) or "nolgkm" in l, l
                    touch=c.src|c.dst
                    last=-1
                    for i,p in enumerate(pend):
                        if p & touch: last=i
                    if last>=0:
                        n=len(pend)-1-last
                        n=min(n,15)
                        out.append(f"s_waitcnt lgkmcnt({n})")
                        pend=pend[len(pend)-n:] if n>0 else []
                    if c.kind=="ds": pend.append(set(c.dst))
            out.append(l)
        self.lines=out
    def caplgkm(self):
        out=[]; n=0
        for l in self.lines:
            if l.startswith("ds_"):
                if n>=15: out.append("s_waitcnt lgkmcnt(14)"); n=14
                n+=1
            elif l.startswith("s_waitcnt"):
                m=re.search(r"lgkmcnt\((\d+)\)", l)
                if m: n=min(n,int(m.group(1)))
            out.append(l)
        self.lines=out
    def finish(self, verbose=False):
        self.autolgkm()
        self.caplgkm()
        ins=[Ins(l) for l in self.lines]
        added=0
        MAXW=13
        while True:
            labels={x.label:i for i,x in enumerate(ins) if x.kind=="label"}
            jumps={}
            for i,x in enumerate(ins):
                if x.kind=="branch":
                    jumps.setdefault(labels[x.target],[]).append(i)
            out=[]; changed=False
            extra={}
            for i,c in enumerate(ins):
                if c.kind not in ("valu","mfma","ds","vmem","salu"): continue
                worst=0
                stack=[(i,0)]; seen={}
                while stack:
                    j,d=stack.pop()
                    preds=[]
                    if j>0 and not ins[j-1].uncond: preds.append(j-1)
                    if ins[j].kind=="label": preds+=jumps.get(j,[])
                    for q in preds:
                        p=ins[q]
                        r=need(p,c)-d
                        if r>worst: worst=r
                        nd=d+p.ws+extra.get(q,0)
                        if nd<MAXW and seen.get(q,99)>nd:
                            seen[q]=nd; stack.append((q,nd))
                if worst>0:
                    extra[i]=worst; changed=True
            if not changed: break
            for i,c in enumerate(ins):
                if i in extra:
                    out.append(Ins(f"s_nop {extra[i]-1} ; auto")); added+=extra[i]
                out.append(c)
            ins=out
        if verbose: print("auto wait states:",added, "instrs:", sum(1 for x in ins if x.ws>0))
        return "\n".join((x.text if x.kind in("label",) else "    "+x.text) for x in ins)+"\n"

def vr(b,n=1): return f"v{b}" if n==1 else f"v[{b}:{b+n-1}]"
def ar(b,n=1): return f"a{b}" if n==1 else f"a[{b}:{b+n-1}]"
def sr(b,n=1): return f"s{b}" if n==1 else f"s[{b}:{b+n-1}]"

def interleave(main, fill, per=2, start=0):
    out=[]; k=0
    for i,m in enumerate(main):
        out.append(m)
        if i>=start:
            for _ in range(per):
                if k<len(fill): out.append(fill[k]); k+=1
    out+=fill[k:]
    return out

class SAlloc:
    def __init__(self, start, end=101):
        self.n=start; self.end=end; self.names={}
    def __call__(self, name, n=1, align=None):
        al = align or (1 if n==1 else (2 if n==2 else 4))
        self.n=(self.n+al-1)//al*al
        b=self.n; self.n+=n
        assert self.n<=self.end+1, "out of sgprs"
        self.names[name]=b
        return sr(b,n)

def weave(main, fill, nv=2, start=0):
    out=[]; k=0
    for i,m in enumerate(main):
        out.append(m)
        if i<start: continue
        used=0; cnt=0
        while k<len(fill) and cnt<3:
            f=fill[k]
            c=0
            if f.startswith("v_"): c=2 if f.startswith(("v_permlane","v_exp","v_rcp")) else 1
            if used+c>nv and not (used==0): break
            out.append(f); k+=1; used+=c; cnt+=1
    out+=fill[k:]
    return out
```

```python
from common import *
import gemm
def setup_b(a,S,phase):
    t0,t1,t2,t3=S["t0"],S["t1"],S["t2"],S["t3"]
    b=S["wflav"]
    o=lo(S['srdO']); x=lo(S['srdX'])
    if phase==1:
        a(f"s_lshr_b32 {t0}, {sROLE}, 5")
        a(f"s_sub_u32 {t0}, {t0}, 4")
        a(f"s_lshl_b32 {t0}, {t0}, 2")
        a(f"s_and_b32 {t1}, {sROLE}, 3")
        a(f"s_add_u32 {b}, {t0}, {t1}")
        srd(a,S['srdW'],64,640*3840); srd(a,S['srdX'],56,2621440)
        a(f"s_mov_b64 {sr(o,2)}, s[4:5]"); a(f"s_mov_b32 s{o+2}, {WS_BYTES}"); a(f"s_mov_b32 s{o+3}, 0x20000")
        a(f"s_and_b32 {t0}, {b}, 7")
        a(f"s_lshr_b32 {t1}, {b}, 3")
        a(f"s_lshl_b32 {S['s0']}, {t1}, 5")
        a(f"s_add_u32 {S['s1']}, {S['s0']}, 32")
        a(f"s_mov_b32 {S['xb']}, 0")
        rs,nb,ob,wstr=3840,30,WS_BQKV,3840
    else:
        srd(a,S['srdW'],72,640*1280); srd(a,S['srdO'],80,2048*2560)
        a(f"s_mov_b64 {sr(x,2)}, s[4:5]"); a(f"s_mov_b32 s{x+2}, {WS_BYTES}"); a(f"s_mov_b32 s{x+3}, 0x20000")
        a(f"s_mul_i32 {t1}, {b}, 21846")
        a(f"s_lshr_b32 {t1}, {t1}, 16")
        a(f"s_mul_i32 {t0}, {t1}, 3")
        a(f"s_sub_u32 {t0}, {b}, {t0}")
        a(f"s_mul_i32 {S['s0']}, {t1}, 13")
        a(f"s_add_u32 {S['s1']}, {S['s0']}, 13")
        a(f"s_min_u32 {S['s1']}, {S['s1']}, 64")
        a(f"s_mov_b32 {S['xb']}, {WS_BO}")
        rs,nb,ob,wstr=2560,10,1280,1280
    a(f"s_lshl_b32 {t0}, {t0}, 2")
    a(f"s_add_u32 {t0}, {t0}, {sW}")
    a(f"s_cmp_ge_u32 {t0}, {nb}")
    a(f"s_cselect_b32 {t2}, {OOB}, 0")
    a(f"s_lshl_b32 {t0}, {t0}, 7")
    a(f"s_add_u32 {S['wcol']}, {t0}, {t2}")
    a(f"s_mul_i32 {t1}, {S['s0']}, {32*rs}")
    a(f"s_add_u32 {t1}, {t1}, {t0}")
    a(f"s_add_u32 {S['out']}, {t1}, {ob}")
    a(f"s_mov_b32 {S['ostep']}, {32*rs}")
    for i in range(4): a(f"s_mov_b32 {S['d%d'%i]}, {(i>>1)*64+(i&1)*16*rs}")
    a(f"s_mov_b32 {S['wstr']}, {wstr}")
    a(f"s_mov_b32 {S['perm']}, 1")
    a(f"s_mov_b32 {S['vmode']}, 2")
    a(f"s_mov_b32 {S['flag']}, {OOB}")
    a(f"s_mov_b32 {S['phase']}, {phase}")
    a(f"v_and_b32 v10, 15, v0")
    a(f"v_lshrrev_b32 v11, 4, v0")
    a(f"v_mul_u32_u24 v10, {rs}, v10")
    a(f"v_lshl_add_u32 v10, v11, 4, v10")
    a(f"v_add_u32 v{gemm.vOUT}, {t2}, v10")
    a("s_waitcnt lgkmcnt(0)")

def gen_battn(a,S):
    t0,t1,t2,t3=S["t0"],S["t1"],S["t2"],S["t3"]; b=S["wflav"]
    i_,row,cx=S["s"],S["slot"],S["xw"]
    vIN,vOU,vTOK,vNEG=2,3,4,5
    vK,vV,vST,vQ,vLG,vPL,vPH,vOA,vT=8,88,168,198,208,216,224,232,252
    a(f"v_lshrrev_b32 v{vT}, 5, v0")
    a(f"v_and_b32 v{vT+1}, 31, v0")
    a(f"v_mul_u32_u24 v{vT+1}, 40, v{vT+1}")
    a(f"v_mul_u32_u24 v{vT+2}, 3840, v{vT}")
    a(f"v_add_u32 v{vIN}, v{vT+2}, v{vT+1}")
    a(f"v_mul_u32_u24 v{vT+2}, 1280, v{vT}")
    a(f"v_add_u32 v{vOU}, v{vT+2}, v{vT+1}")
    a(f"s_lshl_b32 {t0}, {b}, 2")
    a(f"s_add_u32 {t0}, {t0}, {sW}")
    a(f"s_lshl_b32 {t0}, {t0}, 5")
    a(f"s_sub_u32 {row}, {t0}, 14")
    a(f"s_sub_u32 {t0}, {row}, 2")
    a(f"v_add_u32 v{vTOK}, {t0}, v{vT}")
    sc=20**-0.5
    a(f"s_mov_b32 {cx}, {f32(sc*math.log2(math.e)):#x}")
    a(f"v_mov_b32 v{vNEG}, {f32(-1e9/sc):#x}")
    def loads():
        a(f"s_mul_i32 {t0}, {row}, 3840")
        a(f"s_add_u32 {t0}, {t0}, {WS_BQKV}")
        a(f"s_cmp_lt_u32 {row}, 2048")
        a(f"s_cselect_b32 {t0}, {t0}, {OOB}")
        for m in range(3):
            for (o,n) in ((0,4),(4,4),(8,2)):
                a(f"buffer_load_dwordx{n} {vr(vST+10*m+o,n)}, v{vIN}, {sWS}, {t0} offen offset:{1280*m+4*o} sc1")
    loads()
    a(f"s_mov_b32 {i_}, 0")
    a.label("Lb_warm")
    a("s_waitcnt vmcnt(0)")
    a.label("Lb_loop")
    for base in (vK,vV):
        for w in range(7,0,-1):
            for j in range(0,10,2): a(f"v_mov_b64 {vr(base+10*w+j,2)}, {vr(base+10*(w-1)+j,2)}")
    for m,dst in enumerate((vQ,vK,vV)):
        for j in range(0,10,2): a(f"v_mov_b64 {vr(dst+j,2)}, {vr(vST+10*m+j,2)}")
    a(f"s_mul_i32 {t2}, {row}, 1280")
    a(f"s_add_u32 {t2}, {t2}, {WS_BO}")
    a(f"s_add_u32 {row}, {row}, 2")
    a(f"v_add_u32 v{vTOK}, 2, v{vTOK}")
    loads()
    a(f"s_add_u32 {i_}, {i_}, 1")
    a(f"s_cmp_lt_u32 {i_}, 8")
    a("s_cbranch_scc1 Lb_warm")
    for j in range(10):
        for w in range(8):
            a(f"v_dot2_f32_bf16 v{vLG+w}, v{vQ+j}, v{vK+10*w+j}, {('v%d'%(vLG+w)) if j else 0}")
    for w in range(1,8):
        a(f"v_cmp_le_i32 vcc, {2*w}, v{vTOK}")
        a(f"v_cndmask_b32 v{vLG+w}, v{vNEG}, v{vLG+w}, vcc")
    mx,sm=vT,vT+1
    a(f"v_max3_f32 v{mx}, v{vLG}, v{vLG+1}, v{vLG+2}")
    a(f"v_max3_f32 v{mx}, v{mx}, v{vLG+3}, v{vLG+4}")
    a(f"v_max3_f32 v{mx}, v{mx}, v{vLG+5}, v{vLG+6}")
    a(f"v_max_f32 v{mx}, v{mx}, v{vLG+7}")
    a(f"v_mul_f32 v{mx}, {cx}, v{mx}")
    for w in range(8): a(f"v_fma_f32 v{vLG+w}, v{vLG+w}, {cx}, -v{mx}")
    for w in range(8): a(f"v_exp_f32 v{vLG+w}, v{vLG+w}")
    a(f"v_add_f32 v{sm}, v{vLG}, v{vLG+1}")
    for w in range(2,8): a(f"v_add_f32 v{sm}, v{sm}, v{vLG+w}")
    a(f"v_rcp_f32 v{sm}, v{sm}")
    for w in range(8): a(f"v_mul_f32 v{vLG+w}, v{vLG+w}, v{sm}")
    for w in range(8):
        a(f"v_cvt_pk_bf16_f32 v{vPL+w}, v{vLG+w}, 0")
        a(f"v_cvt_pk_bf16_f32 v{vPH+w}, 0, v{vLG+w}")
    for w in range(8):
        for j in range(10):
            for h,P in enumerate((vPL,vPH)):
                d=vOA+2*j+h
                a(f"v_dot2_f32_bf16 v{d}, v{vV+10*w+j}, v{P+w}, {('v%d'%d) if w else 0}")
    for j in range(10): a(f"v_cvt_pk_bf16_f32 v{vLG+j}, v{vOA+2*j}, v{vOA+2*j+1}")
    a("s_waitcnt vmcnt(0)")
    for (o,n) in ((0,4),(4,4),(8,2)):
        a(f"buffer_store_dwordx{n} {vr(vLG+o,n)}, v{vOU}, {sWS}, {t2} offen offset:{4*o}")
    a(f"s_cmp_lt_u32 {i_}, 23")
    a("s_cbranch_scc1 Lb_loop")
```

```python
from common import *
QK_S=576; QK_K=4*QK_S; L_QK=0
L_VI=4608
L_KV=8192
vL16,vL4,vIDX,vQKW,vQKR,vVW,vBST,vCST,vCLD,vDST,vKV,vTAG = range(12)
vSEL=12; vSENT=16
vT=20
vBS2=26; vAST=27
vM=28
vQK=48
vAV=64
vKX=72; vVX=88
vS=104
vR=116
vVM=128
vP=136
vFLG=143
vO=144
vOP=160
vPUB=168; vE=172
vWO=176
aQ=0; aONE=240

def gen_chain(a, cfg):
    al=SAlloc(S_FIRST,83); S={}
    for n in ("srdq","srdk","srdv","srdo"): S[n]=al(n,4)
    for n in ("m0t","cexp","mlo"): S[n]=al(n,2)
    for n in ["x","c","step","t0","t1","t2","t3","kh","nh","cu","p0","p1","p2","p3","p4","sent","u",
              "bB","bBr","bC","bDr","bDw","bAw","bA1","bA2","bKV","bKM","lKV","fl","oD","oD4","oA","oC","oK","rC","nA","nB","nC","nD"]: S[n]=al(n)
    cfg["chainS"]=S
    stamps = cfg.get("stamps",False); ST0=lo(S["srdq"])
    ws=sWS; sw=sW
    sx,sc,sstep=S["x"],S["c"],S["step"]
    t0,t1,t2,t3=S["t0"],S["t1"],S["t2"],S["t3"]
    skh,snh,scu,su=S["kh"],S["nh"],S["cu"],S["u"]
    E=lambda l: emit(a,l)
    NCP=cfg.get("ncopy",8)
    a.label("Lc_start")
    lane="v40"
    a(f"v_mov_b32 {lane}, v0")
    a(f"s_lshr_b32 {sx}, {sROLE}, 5")
    a(f"s_and_b32 {sc}, {sROLE}, 31")
    a(f"s_mul_i32 {t0}, {sx}, 24")
    a(f"s_add_u32 {scu}, {t0}, {sc}")
    a(f"s_lshr_b32 {skh}, {sw}, 1")
    a(f"s_and_b32 {snh}, {sw}, 1")
    wsrd=[S["srdq"],S["srdk"],S["srdv"],S["srdo"]]
    for i,r in enumerate(wsrd): srd(a,r,16+8*i,7864320)
    pQ,pO,pT=50,51,52
    a(f"v_lshrrev_b32 v30, 3, {lane}")
    a(f"v_and_b32 v31, 7, {lane}")
    a(f"v_xor_b32 v31, v31, v30")
    a(f"v_mul_u32_u24 v32, 12288, v30")
    a(f"v_lshl_add_u32 v{pQ}, v31, 4, v32")
    a(f"v_mul_u32_u24 v32, 1280, v30")
    a(f"v_lshl_add_u32 v{pO}, v31, 4, v32")
    sq=S["p0"]; so=S["p1"]; sl=S["p2"]
    a(f"s_mul_i32 {t0}, {skh}, 320")
    a(f"s_lshl_b32 {t1}, {snh}, 5")
    a(f"s_add_u32 {t0}, {t0}, {t1}")
    a(f"s_mul_i32 {t0}, {t0}, 12288")
    a(f"s_lshl_b32 {t2}, {scu}, 7")
    a(f"s_add_u32 {sq}, {t0}, {t2}")
    a(f"s_lshl_b32 {t0}, {scu}, 6")
    a(f"s_add_u32 {t0}, {t0}, {t1}")
    a(f"s_mul_i32 {t0}, {t0}, 1280")
    a(f"s_mul_i32 {t1}, {skh}, 640")
    a(f"s_add_u32 {so}, {t0}, {t1}")
    a(f"s_mul_i32 {t0}, {skh}, {9*8192}")
    a(f"s_lshl_b32 {t1}, {snh}, 12")
    a(f"s_add_u32 {sl}, {t0}, {t1}")
    a(f"s_mul_i32 {t0}, {sw}, 24")
    a(f"s_add_u32 {su}, {t0}, {sc}")
    a(f"v_and_b32 v30, 15, {lane}")
    a(f"v_bfe_u32 v31, {lane}, 4, 1")
    a(f"v_bfe_u32 v32, {lane}, 5, 1")
    a(f"v_bfe_u32 v33, {lane}, 3, 1")
    a(f"v_and_b32 v34, 7, {lane}")
    a(f"v_lshrrev_b32 v35, 4, {lane}")
    a("s_waitcnt lgkmcnt(0)")
    wflav=cfg.get("wflav","nt")
    blocks=[(m,i) for m in range(4) for i in range(5)]
    NS=9
    def dma(bi):
        m,i=blocks[bi]; slot=bi%NS
        for q in range(4):
            a(f"s_add_u32 m0, {sl}, {slot*8192+q*1024}")
            if m<3:
                a(f"s_add_u32 {t0}, {sq}, {(64*i+8*q)*12288}")
                a(f"buffer_load_dwordx4 v{pQ}, {wsrd[m]}, {t0} offen {wflav} lds")
            else:
                a(f"s_add_u32 {t0}, {so}, {8*q*1280+128*i}")
                a(f"buffer_load_dwordx4 v{pO}, {wsrd[m]}, {t0} offen {wflav} lds")
    for bi in range(NS-1): dma(bi)
    a(f"v_bfe_u32 v37, {lane}, 2, 1")
    a(f"v_and_b32 v38, 3, {lane}")
    a(f"s_mul_i32 {t0}, {skh}, {9*8192}")
    for jl in range(2):
        for tt in range(2):
            a(f"v_lshl_add_u32 v44, v31, 2, v37")
            a(f"v_add_u32 v44, {2*jl}, v44")
            a(f"v_lshrrev_b32 v45, 1, v38")
            a(f"s_lshl_b32 {t1}, {snh}, 2")
            a(f"s_add_u32 {t1}, {t1}, {2*tt}")
            a(f"v_add_u32 v45, {t1}, v45")
            a(f"v_xor_b32 v45, v45, v44")
            a(f"v_lshl_add_u32 v44, v32, 4, v44")
            a(f"v_lshl_add_u32 v44, v33, 3, v44")
            a(f"v_lshl_add_u32 v44, v44, 7, {t0}")
            a(f"v_lshl_add_u32 v44, v45, 4, v44")
            a(f"v_and_b32 v45, 1, v38")
            a(f"v_lshl_add_u32 v{pT+jl*2+tt}, v45, 3, v44")
    a(f"v_lshrrev_b32 v44, 2, {lane}")
    a(f"v_and_b32 v45, 7, v44")
    a(f"s_lshl_b32 {t1}, {snh}, 2")
    a(f"v_add_u32 v46, {t1}, v38")
    a(f"v_xor_b32 v45, v45, v46")
    a(f"v_lshl_add_u32 v44, v44, 7, {t0}")
    a(f"v_lshl_add_u32 v{pT+4}, v45, 4, v44")
    for r in range(5): a(f"v_add_u32 v{pT+5+r}, 57344, v{pT+r}")
    a(f"v_lshlrev_b32 v{vL16}, 4, {lane}")
    a(f"v_lshlrev_b32 v{vL4}, 2, {lane}")
    a(f"v_mul_u32_u24 v36, 0xAAAA, v33")
    a(f"v_add_u32 v{vIDX}, 0x4444, v36")
    a(f"s_mul_i32 {t0}, {skh}, {2*QK_S}")
    a(f"s_lshl_b32 {t1}, {snh}, 8")
    a(f"s_add_u32 {t0}, {t0}, {t1}")
    a(f"v_mul_u32_u24 v36, {QK_K}, v32")
    a(f"v_mul_u32_u24 v37, {QK_S}, v31")
    a(f"v_add3_u32 v36, v36, v37, {t0}")
    a(f"v_lshl_add_u32 v{vQKW}, v30, 3, v36")
    a(f"v_mul_u32_u24 v36, {QK_S}, v38")
    a(f"v_lshrrev_b32 v37, 2, {lane}")
    a(f"v_lshl_add_u32 v{vQKR}, v37, 3, v36")
    a(f"s_lshl_b32 {t0}, {snh}, 10")
    a(f"s_lshl_b32 {t1}, {skh}, 9")
    a(f"s_add_u32 {t0}, {t0}, {t1}")
    a(f"s_add_u32 {t0}, {t0}, {L_VI}")
    a(f"v_lshl_add_u32 v36, v31, 8, {t0}")
    a(f"v_lshl_add_u32 v36, v30, 4, v36")
    a(f"v_lshl_add_u32 v{vVW}, v32, 3, v36")
    a(f"s_mul_i32 {t0}, {skh}, {40*SB}")
    a(f"s_mul_i32 {t1}, {snh}, {4*SB}")
    a(f"s_add_u32 {t0}, {t0}, {t1}")
    a(f"s_lshl_b32 {t1}, {sc}, 7")
    a(f"s_add_u32 {t0}, {t0}, {t1}")
    a(f"v_mul_u32_u24 v36, {SB}, v35")
    a(f"v_lshl_add_u32 v36, v34, 4, v36")
    a(f"v_add_u32 v36, {t0}, v36")
    a(f"v_lshl_add_u32 v{vBS2}, v33, 30, v36")
    a(f"v_mul_u32_u24 v37, {8*SB}, v33")
    a(f"v_add_u32 v{vBST}, v37, v36")
    b=lo(S['mlo']); a(f"s_mov_b32 s{b}, 0x00ff00ff"); a(f"s_mov_b32 s{b+1}, 0x00ff00ff")
    a(f"s_lshl_b32 {t0}, {sx}, 7")
    a(f"v_lshlrev_b32 v36, 4, v34")
    a(f"v_lshl_add_u32 v36, v31, 3, v36")
    a(f"v_lshl_add_u32 v37, v32, 1, v33")
    a(f"v_mul_u32_u24 v37, {CCOPY}, v37")
    a(f"v_add3_u32 v{vCST}, v37, v36, {t0}")
    a(f"v_or_b32 v37, v32, v33")
    a(f"v_lshl_add_u32 v{vDST}, v37, 30, v36")
    a(f"v_lshlrev_b32 v36, 7, v35")
    a(f"v_lshl_add_u32 v36, v34, 4, v36")
    a(f"v_cmp_eq_u32 vcc, {sx}, v35")
    a(f"v_cndmask_b32 v37, 0, 1, vcc")
    a(f"v_or_b32 v37, v37, v33")
    a(f"v_lshl_add_u32 v{vCLD}, v37, 30, v36")
    a(f"v_xor_b32 v37, {snh}, v33")
    a(f"v_lshl_add_u32 v{vAST}, v37, 30, v{vL16}")
    a(f"v_and_b32 v36, 1, {lane}")
    a(f"v_lshlrev_b32 v36, 4, v36")
    a(f"v_mov_b32 v37, 0x3f80")
    a(f"v_lshlrev_b32 v37, v36, v37")
    a(f"v_lshrrev_b32 v36, 1, v34")
    for i in range(4):
        a(f"v_cmp_eq_u32 vcc, {i}, v36")
        a(f"v_cndmask_b32 v{vSEL+i}, 0, v37, vcc")
    a(f"v_mov_b32 v36, 0x3f803f80")
    a(f"v_mov_b32 v37, 0x3f003f00")
    for i in range(6): a(f"v_accvgpr_write_b32 a{aONE+i}, v{36 if i<4 else 37}")
    a(f"s_mov_b32 {S['sent']}, {SENT:#x}")
    for i in range(4): a(f"v_mov_b32 v{vSENT+i}, {S['sent']}")
    cb=lo(S['cexp']); ce=f32((192**-0.5)*math.log2(math.e))
    a(f"s_mov_b32 s{cb}, {ce:#x}"); a(f"s_mov_b32 s{cb+1}, {ce:#x}")
    bB,bBr,bC,bDr,bDw,bAw,bA1,bA2,bKV,bKM = (S[n] for n in ("bB","bBr","bC","bDr","bDw","bAw","bA1","bA2","bKV","bKM"))
    a(f"s_lshl_b32 {t0}, {sx}, 18")
    a(f"s_add_u32 {t0}, {t0}, {sXB}")
    a(f"s_add_u32 {bB}, {t0}, {X_B}")
    a(f"s_mul_i32 {t0}, {su}, {SB}")
    a(f"s_add_u32 {bBr}, {bB}, {t0}")
    a(f"s_lshr_b32 {t0}, {su}, 4")
    a(f"s_lshl_b32 {t0}, {t0}, 14")
    a(f"s_and_b32 {t1}, {su}, 15")
    a(f"s_lshl_b32 {t1}, {t1}, 9")
    a(f"s_add_u32 {t0}, {t0}, {t1}")
    a(f"s_add_u32 {bC}, {t0}, {sXB}")
    a(f"s_lshl_b32 {t0}, {sx}, 16")
    a(f"s_add_u32 {t0}, {t0}, {sXB}")
    a(f"s_add_u32 {t0}, {t0}, {X_D}")
    a(f"s_mul_i32 {t1}, {skh}, 5120")
    a(f"s_add_u32 {bDr}, {t0}, {t1}")
    a(f"s_lshl_b32 {t1}, {su}, 7")
    a(f"s_add_u32 {bDw}, {t0}, {t1}")
    a(f"s_cmp_ge_u32 {su}, 80")
    a(f"s_cselect_b32 {t0}, {OOB}, 0")
    for r in (bBr,bC,bDw): a(f"s_add_u32 {r}, {r}, {t0}")
    a(f"s_add_u32 {t3}, {sXB}, {X_A}")
    a(f"s_lshl_b32 {t0}, {scu}, 12")
    a(f"s_add_u32 {bAw}, {t0}, {t3}")
    a(f"s_mul_i32 {t0}, {scu}, 21846")
    a(f"s_lshr_b32 {t0}, {t0}, 16")
    a(f"s_lshl_b32 {t1}, {t0}, 7")
    a(f"s_add_u32 {t1}, {t1}, {sXB}")
    a(f"s_add_u32 {S['fl']}, {t1}, {F_L}")
    a(f"s_mul_i32 {t0}, {t0}, 3")
    a(f"s_sub_u32 {t1}, {scu}, {t0}")
    a(f"s_cmp_eq_u32 {t1}, 0")
    a(f"s_cselect_b32 {t2}, 1, 0")
    a(f"s_add_u32 {t2}, {t2}, {t0}")
    a(f"s_lshl_b32 {t2}, {t2}, 12")
    a(f"s_add_u32 {bA1}, {t2}, {t3}")
    a(f"s_cmp_eq_u32 {t1}, 2")
    a(f"s_cselect_b32 {t2}, 1, 2")
    a(f"s_add_u32 {t2}, {t2}, {t0}")
    a(f"s_lshl_b32 {t2}, {t2}, 12")
    a(f"s_add_u32 {bA2}, {t2}, {t3}")
    a(f"s_lshl_b32 {t0}, {scu}, 12")
    a(f"s_mul_i32 {t1}, {skh}, {WS_V-WS_K}")
    a(f"s_add_u32 {t0}, {t0}, {t1}")
    a(f"s_lshl_b32 {t1}, {snh}, 11")
    a(f"s_add_u32 {t0}, {t0}, {t1}")
    a(f"s_add_u32 {bKV}, {t0}, {WS_K}")
    a(f"s_lshl_b32 {t0}, {scu}, 12")
    a(f"s_lshl_b32 {t1}, {sw}, 10")
    a(f"s_add_u32 {t0}, {t0}, {t1}")
    a(f"s_add_u32 {t0}, {t0}, {sXB}")
    a(f"s_add_u32 {bKM}, {t0}, {X_KVM}")
    a(f"s_lshl_b32 {t0}, {sw}, 11")
    a(f"s_add_u32 {S['lKV']}, {t0}, {L_KV}")
    for n in ("nA","nB","nC","nD"): a(f"s_mov_b32 {S[n]}, 0")
    SE4,SE2=vr(vSENT,4),vr(vSENT,2)
    def consume(bi):
        m,i=blocks[bi]; slot=bi%NS
        hi = slot*8192 >= 57344
        R=lambda r: pT+r+(5 if hi else 0)
        ob=slot*8192-(57344 if hi else 0)
        if m<3:
            for tt in range(2):
                for jj in range(4):
                    a(f"ds_read_b64_tr_b16 {ar(aQ+((m*2+tt)*5+i)*8+2*jj,2)}, v{R((jj&1)*2+tt)} offset:{ob+32*(jj>>1)*128}")
        else:
            for u in range(2):
                for ks in range(2):
                    for hh in range(2):
                        a(f"ds_read_b64_tr_b16 {vr(vWO+((2*i+u)*2+ks)*4+2*hh,2)}, v{R(4)} offset:{ob+(32*ks+16*hh)*128+8*u}")
    for bi in range(20):
        a(f"s_waitcnt vmcnt({4*min(NS-2,19-bi)}) lgkmcnt(0)")
        a("s_barrier")
        if bi+NS-1<20: dma(bi+NS-1)
        consume(bi)
    a("s_waitcnt lgkmcnt(0)")
    if cfg.get("rec"): cfg["rec"](a,1)
    confirm_mode(a,"Lc_cm",44,lane)
    if "near" in cfg: a(f"s_add_u32 {bC}, {bC}, {cfg['near']}")
    else:
        a(f"s_cmp_gt_u32 s84, {(512<<16)+128}")
        a(f"s_cselect_b32 {t0}, 8192, 0")
        a(f"s_add_u32 {bC}, {bC}, {t0}")
    a("s_barrier")
    h0,h1,h2,h3=S["p0"],S["p1"],S["p2"],S["p3"]
    ldF=f"buffer_load_dword v{vFLG}, off, {ws}, {S['fl']} sc1"
    def kv_dma(seg,tt):
        return [f"s_and_b32 {t1}, {seg}, 1", f"s_lshl_b32 {t1}, {t1}, 13", f"s_add_u32 m0, {t1}, {S['lKV']}",
                f"s_mul_i32 {tt}, {seg}, {SEG_STRIDE}", f"s_add_u32 {tt}, {tt}, {bKV}"]+\
               [f"buffer_load_dwordx4 v{vL16}, {ws}, {tt} offen offset:{q*1024} sc1 lds" for q in range(2)]
    a(f"s_mov_b32 {sstep}, 0")
    if not cfg.get("noflag"):
        a.label("Lc_f0")
        a(ldF); E(tmo())
        a("s_waitcnt vmcnt(0)")
        a(f"v_cmp_eq_u32 vcc, 0, v{vFLG}")
        a("s_cbranch_vccnz Lc_f0")
    E(kv_dma(sstep,t0))
    oD,oD4,oA,oC,oK,rC = (S[n] for n in ("oD","oD4","oA","oC","oK","rC"))
    a(f"s_mov_b32 {oD}, {bDr}")
    a(f"s_add_u32 {oD4}, {oD}, 4096")
    a(f"s_mov_b32 {rC}, 0")
    a("s_waitcnt vmcnt(0)")
    a("s_barrier")
    if cfg.get("rec"): cfg["rec"](a,2)
    modes=cfg.get("modes",(0,1))
    for mode in modes:
        for w in range(4):
            if (mode,w)!=(modes[-1],3):
                a(f"s_lshl_b32 {t0}, {sMODE}, 2")
                a(f"s_add_u32 {t0}, {t0}, {sw}")
                a(f"s_cmp_eq_u32 {t0}, {mode*4+w}")
                a(f"s_cbranch_scc1 Lc{mode}{w}_loop")
            else: a(f"s_branch Lc{mode}{w}_loop")

    def loop(mode,w):
        loc="sc1" if mode else ""
        kh,nh=w>>1,w&1
        L=lambda n: f"Lc{mode}{w}_{n}"
        names=[]
        def stamp(name,rt=False):
            if not stamps: return []
            i=len(names); names.append(name); cfg["stamp_names"]=names
            r=ST0+2*i if i<8 else 84+2*(i-8)
            return [f"{'s_memrealtime' if rt else 's_memtime'} {sr(r,2)} ; nolgkm {name}"]
        slow=[]
        cnt=lambda n: [f"s_add_u32 {S[n]}, {S[n]}, 1"] if cfg.get("count") else []
        def exact(regs, again):
            o=["s_waitcnt vmcnt(0)"]
            for k,r in enumerate(regs):
                o.append(f"v_cmp_eq_u32 {S['m0t'] if k==0 else 'vcc'}, {S['sent']}, v{r}")
                if k: o.append(f"s_or_b64 {S['m0t']}, {S['m0t']}, vcc")
            return o+[f"s_cbranch_scc1 {again}"]
        def often(lab): return [f"s_and_b32 {S['p4']}, {sTMO}, 15", f"s_cbranch_scc1 {lab}"]
        d_ld=[f"buffer_load_dwordx4 {vr(vM+4*i,4)}, v{vL16}, {ws}, {oD4 if i==4 else oD} offen offset:{(i%4)*1024} sc1" for i in range(5)]
        def smf(acc,i,m,tt): return f"v_smfmac_f32_16x16x64_bf16 {vr(acc,4)}, {vr(vM+4*i,4)}, {ar(aQ+((m*2+tt)*5+i)*8,8)}, v{vIDX}"
        def qk(i,tiles=(0,1)): return [smf(vQK+(tt*2+m)*4,i,m,tt) for tt in tiles for m in range(2)]
        vs=[smf(vAV+4*tt,i,2,tt) for i in range(5) for tt in range(2)]
        def chk(i):
            d0,d2=vM+4*i,vM+4*i+2; lab=L(f"D{i}")
            slow.extend([lab+"_r:", f"s_waitcnt vmcnt({4-i})", f"v_cmp_u_f32 vcc, v{d0}, v{d2}", f"s_cbranch_vccz {lab}_c",
                         lab+"_s:"]+d_ld[i:]+cnt("nD")+tmo()+often(lab+"_r")+exact([d0,d2],lab+"_s")+[f"s_branch {lab}_c"])
            return [f"s_waitcnt vmcnt({4-i})", f"v_cmp_u_f32 vcc, v{d0}, v{d2}"], [f"s_cbranch_vccnz {lab}_s", lab+"_c:"]
        def merge(A,B):
            return [f"v_permlane32_swap_b32 v{A+r}, v{B+r}" for r in range(4)]+[f"v_pk_add_f32 {vr(A+r,2)}, {vr(A+r,2)}, {vr(B+r,2)}" for r in (0,2)]+\
                   [f"v_cvt_pk_bf16_f32 v{A}, v{A}, v{A+1}", f"v_cvt_pk_bf16_f32 v{A+1}, v{A+2}, v{A+3}"]
        def taker(fill):
            def take(n):
                o=fill[:n]; del fill[:n]
                return o+delay(n-len(o))
            return take

        a.label(L("loop"))
        a(";AUTOLGKM_ON")
        E(stamp("top")); E(stamp("rt",True))
        fill=[f"s_and_b32 {t0}, {sstep}, 1", f"s_lshl_b32 {oA}, {t0}, 11", f"v_mov_b32 v{vTAG}, {t0}",
              f"s_lshl_b32 {t0}, {t0}, 13", f"s_add_u32 {t0}, {t0}, {L_KV}", f"v_add_u32 v{vKV}, {t0}, v{vL16}"]
        fill+=[f"ds_read_b128 {vr(vKX+4*f,4)}, v{vKV} offset:{f*1024}" for f in range(8)]
        fill+=[f"s_xor_b32 {t0}, {oA}, 2048", f"s_add_u32 {h1}, {t0}, {bAw}",
               f"s_add_u32 {oC}, {rC}, {bC}", f"s_add_u32 {rC}, {rC}, {CRING}", f"s_cmp_eq_u32 {rC}, {3*CRING}", f"s_cselect_b32 {rC}, 0, {rC}",
               f"s_add_u32 {h2}, {rC}, {bC}", f"s_add_u32 {h0}, {h2}, {4*CCOPY}",
               f"s_and_b32 {t0}, {sstep}, 3", f"s_mul_i32 {oK}, {t0}, {KVM_RING}", f"s_add_u32 {oK}, {oK}, {bKM}",
               f"s_xor_b32 {t0}, {t0}, 2", f"s_lshl_b32 {t0}, {t0}, 14", f"s_add_u32 {h3}, {t0}, {bDw}"]
        fill+=[f"v_mov_b64 {vr(r,2)}, 0" for r in range(vQK,vAV+8,2)]
        take=taker(fill)
        E(take(cfg.get("dD",34)))
        for i in range(5):
            a(d_ld[i])
            if i<4: E(take(cfg.get("dD2",8)))
        E(fill)
        c0,c1=chk(0); E(c0+c1)
        E(stamp("D0"))
        for i in range(4):
            g=qk(i); c0,c1=chk(i+1)
            E(g[:1]+c0+g[1:3]+c1+g[3:])
        E(stamp("D4"))
        hk=[f"buffer_store_dwordx2 {SE2}, v{vCST}, {ws}, {h2} offen sc1"]
        if NCP>4: hk.append(f"buffer_store_dwordx2 {SE2}, v{vCST}, {ws}, {h0} offen sc1")
        hk.append(f"buffer_store_dwordx2 {SE2}, v{vDST}, {ws}, {h3} offen {loc}")
        def qkm(tt): return merge(vQK+8*tt,vQK+8*tt+4)+[f"ds_write_b64 v{vQKW}, {vr(vQK+8*tt,2)} offset:{tt*128}"]
        g=qk(4)
        E(g[:1]+hk[:1]+g[1:])
        E(qkm(0)); E(hk[1:-1]); E(qkm(1))
        E(vs[:1]+hk[-1:]+vs[1:2]+([] if cfg.get("noflag") else [ldF])+vs[2:3])
        a("s_waitcnt lgkmcnt(0)")
        a("s_barrier")
        E(stamp("bar1"))
        tr=lambda ks,m:[f"ds_read_b64_tr_b16 {vr(vQK+8*ks+4*m+2*hh,2)}, v{vQKR} offset:{L_QK+m*QK_K+(2*ks+hh)*128}" for hh in range(2)]
        E(tr(0,0)+tr(0,1)+tr(1,0)+tr(1,1) if w==2 else tr(0,0)+tr(1,0)+tr(0,1)+tr(1,1))
        if w==3:
            a(f"buffer_store_dwordx4 {SE4}, v{vL16}, {ws}, {h1} offen {loc}")
            a(f"buffer_store_dword v{vSENT}, v{vL4}, {ws}, {h1} offen offset:1024 {loc}")
        E(vs[3:4])
        a(f"s_add_u32 {t0}, {bAw}, {oA}")
        a(f"s_add_u32 {t2}, {bA1}, {oA}")
        a(f"s_add_u32 {t3}, {bA2}, {oA}")
        D=[vS,vS+4,vS+8]; Dm=vS+8
        def sc_(k): return [f"v_mfma_f32_16x16x32_bf16 {vr(D[k],4)}, {vr(vKX+(ks*2+k)*4 if k<2 else vQK+4+8*ks,4)}, {vr(vQK+8*ks,4)}, {vr(D[k],4) if ks else 0}" for ks in range(2)]
        dp=lambda d,s,bm: f"v_add_f32_dpp v{d}, v{s}, v{s} row_ror:8 row_mask:0xf bank_mask:{bm}"
        U0,U1=vT+4,vT+5
        def fin(k):
            if k<2: return [dp(vT+r,D[k]+r,"0xc" if k else "0x3") for r in range(4)]
            return [dp(U0,Dm,"0x3"),dp(U1,Dm+1,"0x3"),"s_nop 0",dp(U0,Dm+2,"0xc"),dp(U1,Dm+3,"0xc"),f"v_permlane32_swap_b32 v{U0}, v{U1}",f"v_add_f32 v{U0}, v{U0}, v{U1}"]
        first=w if w<3 else 0; rest=[k for k in range(3) if k!=first]
        E(sc_(first)+sc_(rest[0])); E(fin(first))
        if w<2: a(f"buffer_store_dwordx4 {vr(vT,4)}, v{vAST}, {ws}, {t0} offen {loc}")
        if w==2: a(f"buffer_store_dword v{U0}, v{vL4}, {ws}, {t0} offen offset:1024 {loc}")
        E(stamp("A_st"))
        spA=cfg.get("specA",1)
        RS=[vR,vO]
        def ldA(k):
            R1,R2=RS[k],RS[k]+6
            return [f"buffer_load_dwordx4 {vr(R1,4)}, v{vL16}, {ws}, {t2} offen sc1", f"buffer_load_dwordx4 {vr(R2,4)}, v{vL16}, {ws}, {t3} offen sc1",
                    f"buffer_load_dword v{R1+4}, v{vL4}, {ws}, {t2} offen offset:1024 sc1", f"buffer_load_dword v{R2+4}, v{vL4}, {ws}, {t3} offen offset:1024 sc1"]
        sal=[f"s_add_u32 {h0}, {sstep}, 1"]
        dm=kv_dma(h0,h1); sal+=dm[:5]; dm=dm[5:]
        if cfg.get("l2kv"): sal[0:1]=[f"s_add_u32 {h0}, {sstep}, 1", f"s_and_b32 {h0}, {h0}, 1"]
        sal+=[f"s_bfe_u32 {h2}, {sstep}, 0x10002", f"s_add_u32 {h3}, {sstep}, 2"]
        if kh==0: sal+=[f"v_mov_b64 {vr(vPUB+2*j,2)}, {vr(vQK+4+8*nh+2*j,2)}" for j in range(2)]
        work=sc_(rest[1])+weave(vs[4:],sal,nv=1)+fin(rest[0])+fin(rest[1])+merge(vAV,vAV+4)+[f"ds_write_b64 v{vVW}, {vr(vAV,2)}"]
        pA=cfg.get("pA",14); pA2=cfg.get("pA2",len(work))
        E(work[:pA]); E(delay(pA-len(work))); E(ldA(0)); E(work[pA:pA2])
        if spA: E(ldA(1))
        E(work[max(pA,pA2):])
        a(f"s_cmp_eq_u32 {sstep}, 63")
        a("s_waitcnt lgkmcnt(0)")
        a("s_barrier")
        if kh==1: a(f"ds_read_b128 {vr(vPUB,4)}, v{vL16} offset:{L_VI+nh*1024}")
        for f in range(2): a(f"ds_read_b128 {vr(vVM+4*f,4)}, v{vL16} offset:{L_VI+f*1024}")
        a(f"s_cbranch_scc1 {L('fin')}")
        pub=[f"v_and_or_b32 v{vPUB}, v{vPUB}, -2, {h2}", f"buffer_store_dwordx4 {vr(vPUB,4)}, v{vL16}, {ws}, {oK} offen {loc}"]
        E(stamp("v_done"))
        SP=vS; mx,tp,sm=vE,vE+1,vE+2
        cx=S['cexp']; cx0=f"s{cb}"
        def Acomp(k,ex):
            R1,R2=RS[k],RS[k]+6
            return [f"s_waitcnt vmcnt({3+ex})",
              f"v_pk_add_f32 {vr(SP,2)}, {vr(vT,2)}, {vr(R1,2)}", f"v_pk_add_f32 {vr(SP+2,2)}, {vr(vT+2,2)}, {vr(R1+2,2)}",
              f"s_waitcnt vmcnt({1+ex})",
              f"v_pk_add_f32 {vr(SP,2)}, {vr(SP,2)}, {vr(R2,2)}", f"v_pk_add_f32 {vr(SP+2,2)}, {vr(SP+2,2)}, {vr(R2+2,2)}",
              f"v_add_f32 v{SP+4}, v{U0}, v{R1+4}",
              f"v_maximum3_f32 v{mx}, v{SP}, v{SP+1}, v{SP+2}",
              f"s_waitcnt vmcnt({ex})",
              f"v_add_f32 v{SP+4}, v{SP+4}, v{R2+4}",
              f"v_maximum3_f32 v{mx}, v{mx}, v{SP+3}, v{SP+4}",
              f"v_cmp_u_f32 vcc, v{mx}, v{mx}",
              f"v_max_f32_dpp v{tp}, v{mx}, v{mx} row_ror:8 row_mask:0xf bank_mask:0xf",
              f"v_max_f32_dpp v{mx}, v{mx}, v{mx} row_ror:8 row_mask:0xf bank_mask:0xf"]
        a.label(L("A_chk"))
        E(Acomp(0,4*spA))
        a(f"s_cbranch_vccnz {L('A_s')}")
        a.label(L("A_c"))
        sA=[L("A_s")+":"]+ldA(0)+cnt("nA")
        if spA: sA+=Acomp(1,4)+[f"s_cbranch_vccz {L('A_c')}"]+ldA(1)+cnt("nA")
        slow.extend(sA+tmo()+often(L("A_chk"))+exact([vR,vR+4,vR+6,vR+10],L("A_s"))+Acomp(0,0)+[f"s_branch {L('A_c')}"])
        E(stamp("A_ok"))
        a(f"v_permlane16_swap_b32 v{mx}, v{tp}")
        a(f"v_max_f32 v{sm}, v{mx}, v{tp}")
        a(f"v_max_f32 v{mx}, v{mx}, v{tp}")
        a(f"s_add_u32 {t1}, {bB}, {16*SB}")
        a(f"s_add_u32 {t2}, {bB}, {32*SB}")
        a(f"v_permlane32_swap_b32 v{mx}, v{sm}")
        a(f"v_max_f32 v{mx}, v{mx}, v{sm}")
        a(f"v_mul_f32 v{mx}, {cx0}, v{mx}")
        for r in (0,2): a(f"v_pk_fma_f32 {vr(SP+r,2)}, {vr(SP+r,2)}, {cx}, {vr(mx,2)} op_sel_hi:[1,1,0] neg_lo:[0,0,1] neg_hi:[0,0,1]")
        X,M=vP,vP+4; e2=vP+6; SUM=vS+8
        shl=lambda d,s: f"v_mov_b32_dpp v{d}, v{s} row_shl:8 row_mask:0xf bank_mask:0xf bound_ctrl:0"
        shr=lambda d,s: f"v_mov_b32_dpp v{d}, v{s} row_shr:8 row_mask:0xf bank_mask:0xf bound_ctrl:0"
        E([f"v_exp_f32 v{SP}, v{SP}", f"v_exp_f32 v{SP+1}, v{SP+1}", f"v_exp_f32 v{SP+2}, v{SP+2}",
           f"v_cvt_pk_bf16_f32 v{X}, v{SP}, v{SP+1}", f"v_exp_f32 v{SP+3}, v{SP+3}",
           f"v_fma_f32 v{SP+4}, v{SP+4}, {cx0}, -v{mx}",
           f"v_cvt_pk_bf16_f32 v{X+1}, v{SP+2}, v{SP+3}", shl(X+2,X), f"v_exp_f32 v{M}, v{SP+4}", shl(X+3,X+1), f"v_mov_b32 v{e2}, v{M}"])
        OO=vQK if spA else vO
        pvx=[f"v_mfma_f32_16x16x32_bf16 {vr(OO+4*t,4)}, {vr(vVX+4*t,4)}, {vr(X,4)}, 0" for t in range(4)]
        pvm=[f"v_mfma_f32_16x16x16_bf16 {vr(OO+4*t,4)}, {vr(vVM+2*t,2)}, {vr(M,2)}, {vr(OO+4*t,4)}" for t in range(4)]
        sux=f"v_mfma_f32_16x16x32_bf16 {vr(SUM,4)}, {ar(aONE,4)}, {vr(X,4)}, 0"
        sum_=f"v_mfma_f32_16x16x16_bf16 {vr(SUM,4)}, {ar(aONE+4,2)}, {vr(M,2)}, {vr(SUM,4)}"
        onm=lambda t:[f"v_mul_f32 v{OO+4*t+r}, v{OO+4*t+r}, v{sm}" for r in range(4)]+\
                     [f"v_cvt_pk_bf16_f32 v{vOP+2*t}, v{OO+4*t}, v{OO+4*t+1}", f"v_cvt_pk_bf16_f32 v{vOP+2*t+1}, v{OO+4*t+2}, v{OO+4*t+3}"]
        nx=[f"s_add_u32 {t0}, {sstep}, 1", f"s_and_b32 {t0}, {t0}, 3", f"s_lshl_b32 {t0}, {t0}, 14",
            f"s_add_u32 {oD}, {t0}, {bDr}", f"s_add_u32 {oD4}, {oD}, 4096", f"s_add_u32 {t3}, {t0}, {bDw}"]
        E([sux, f"v_permlane32_swap_b32 v{M}, v{e2}",
           pvx[0], f"v_cvt_pk_bf16_f32 v{M}, v{M}, v{e2}", nx[0],
           pvx[1], shl(M+1,M), nx[1], nx[2],
           sum_, nx[3], nx[4], pvm[0], nx[5], "s_nop 0", pvm[1], "s_nop 0", pvx[2], f"v_rcp_f32 v{sm}, v{SUM}",
           pvx[3], f"v_cndmask_b32 v{sm}, 0, v{sm}, {S['mlo']}"])
        o01=onm(0)+onm(1)
        E(o01[:1]+weave([pvm[2],pvm[3]], o01[1:]))
        E(stamp("pv"))
        OH=vKX; WA=[vM, vM+8, vS]
        def wo(p,u,ks):
            A=WA[p//2]+4*u
            return f"v_mfma_f32_16x16x32_bf16 {vr(A,4)}, {vr(vWO+((2*p+u)*2+ks)*4,4)}, {vr((OH if p%2 else vOP)+4*ks,4)}, {0 if (ks==0 and p%2==0) else vr(A,4)}"
        def wout(g):
            A=WA[g]
            cv=[f"v_cvt_pk_bf16_f32 v{A+k}, v{A+2*k}, v{A+2*k+1}" for k in range(4)]
            return cv[:2]+[f"v_and_or_b32 v{A}, v{A}, -2, v{vTAG}"]+cv[2:]+\
                   [f"buffer_store_dwordx4 {vr(A,4)}, v{vBST if g<2 else vBS2}, {ws}, {[bB,t1,t2][g]} offen {loc}"]
        oh=lambda ks:[shr(OH+4*ks+k,vOP+4*ks+k) for k in range(4)]
        P=lambda p,ks:[wo(p,0,ks),wo(p,1,ks)]
        E(weave(P(0,0)+P(2,0)+P(4,0)+P(1,0)+P(3,0)[:1], oh(0)+onm(2)+onm(3)))
        E(weave(P(4,1)+P(0,1), oh(1)))
        E(weave(P(1,1)+P(3,0)[1:]+[wo(2,0,1),wo(3,0,1),wo(2,1,1),wo(3,1,1)], wout(2)+["s_nop 0"]+wout(0)))
        E(wout(1))
        E(pub[:1])
        a(";AUTOLGKM_OFF")
        E(stamp("wo"))
        RD=vR; RC=vM; FD=vR+4; RB=[vO,vVX]
        fchk=[] if cfg.get("noflag") else [f"v_cmp_gt_u32 vcc, {h3}, v{vFLG}", f"s_cbranch_vccnz @_s", "@_c:"]
        def side(tag):
            lab=L("F"+tag)
            if fchk: slow.extend([lab+"_s:", ldF]+tmo()+["s_waitcnt vmcnt(0)", fchk[0], f"s_cbranch_vccnz {lab}_s", f"s_branch {lab}_c"])
            return [x.replace("@",lab) for x in fchk], dm+pub[1:]
        if w==3:
            a(f"s_cmp_ge_u32 {su}, 80")
            a(f"s_cbranch_scc1 {L('nored')}")
        spB=cfg.get("specB",1)
        ldB=lambda k:[f"buffer_load_dwordx4 {vr(RB[k]+4*i,4)}, v{vL16}, {ws}, {bBr} offen offset:{i*1024} sc1" for i in range(3)]
        def Bcomp(k,ex):
            R=RB[k]
            mB=[f"v_mfma_f32_16x16x32_bf16 {vr(RD,4)}, {vr(vSEL,4)}, {vr(R+4*i,4)}, {vr(RD,4) if i else 0}" for i in range(3)]
            return [f"s_waitcnt vmcnt({2+ex})", mB[0], f"s_waitcnt vmcnt({1+ex})", f"v_bitop3_b32 v{vE}, v{R}, v{R+4}, v{vTAG} bitop3:0x7e", mB[1],
                    f"s_waitcnt vmcnt({ex})", mB[2], f"v_bitop3_b32 v{vE}, v{vE}, v{R+8}, v{vTAG} bitop3:0xf6",
                    f"v_and_b32 v{vE}, 1, v{vE}", f"v_cmp_ne_u32 vcc, 0, v{vE}"]
        E(delay(cfg.get("dB",30)))
        E(ldB(0))
        if spB: E(delay(cfg.get("dB2",30))); E(ldB(1))
        a.label(L("B_chk"))
        E(Bcomp(0,3*spB))
        a(f"s_cbranch_vccnz {L('B_s')}")
        a.label(L("B_c"))
        sB=[L("B_s")+":"]+ldB(0)+cnt("nB")
        if spB: sB+=Bcomp(1,3)+[f"s_cbranch_vccz {L('B_c')}"]+ldB(1)+cnt("nB")
        slow.extend(sB+tmo()+[f"s_branch {L('B_chk')}"])
        for r in range(4): a(f"v_add_f32_dpp v{RD+r}, v{RD+r}, v{RD+r} row_ror:8 row_mask:0xf bank_mask:0xf")
        a(f"s_add_u32 {t2}, {oC}, {4*CCOPY}")
        a(f"v_cvt_pk_bf16_f32 v{vE}, v{RD}, v{RD+1}")
        a(f"v_cvt_pk_bf16_f32 v{vE+1}, v{RD+2}, v{RD+3}")
        E(stamp("B_ok"))
        a("s_barrier")
        a(f"buffer_store_dwordx2 {vr(vE,2)}, v{vCST}, {ws}, {oC} offen sc1")
        E(stamp("C_st"))
        n0=cfg.get("n0",4)
        ldC=lambda k: f"s_add_u32 {t0}, {oC}, {k*CCOPY}\nbuffer_load_dwordx4 {vr(RC+4*(k%n0),4)}, v{vCLD}, {ws}, {t0} offen sc1"
        mC=lambda k: f"v_mfma_f32_16x16x32_bf16 {vr(FD,4)}, {vr(vSEL,4)}, {vr(RC+4*(k%n0),4)}, {vr(RD,4)}"
        cC=lambda k: f"v_cmp_u_f32 vcc, v{RC+4*(k%n0)}, v{RC+4*(k%n0)+2}"
        f0,f1=side("a")
        E(f0)
        if NCP>4: a(f"buffer_store_dwordx2 {vr(vE,2)}, v{vCST}, {ws}, {t2} offen sc1")
        E(delay(cfg.get("dC",16)))
        seq=[]
        for k in range(n0):
            a(ldC(k)); seq.append(k)
            if k<n0-1:
                d=cfg.get("dC2",28)
                if f1: E(delay(d//2)); a(f1.pop(0)); seq.append(-1); E(delay(d-d//2-1))
                else: E(delay(d))
        for x in f1: a(x); seq.append(-1)
        younger=lambda k: len(seq)-1-seq.index(k)
        E([f"s_waitcnt vmcnt({younger(0)})", cC(0), mC(0), f"s_cbranch_vccnz {L('C_t')}"])
        sC=[L("C_t")+":"]
        for k in range(1,NCP):
            if k-1+n0<NCP: sC.append(ldC(k-1+n0)); seq.append(k-1+n0)
            sC+=cnt("nC")+[f"s_waitcnt vmcnt({younger(k)})", cC(k), mC(k), f"s_cbranch_vccz {L('C_c')}"]
        slow.extend(sC+[L("C_x")+":", ldC(0)]+cnt("nC")+tmo()+often(L("C_r"))+exact([RC,RC+2],L("C_x"))+[mC(0), f"s_branch {L('C_c')}",
                     L("C_r")+":", "s_waitcnt vmcnt(0)", cC(0), mC(0), f"s_cbranch_vccz {L('C_c')}", f"s_branch {L('C_x')}"])
        a.label(L("C_c"))
        a(f"v_cvt_pk_bf16_f32 v{vE}, v{FD}, v{FD+1}")
        a(f"v_cvt_pk_bf16_f32 v{vE+1}, v{FD+2}, v{FD+3}")
        a(f"buffer_store_dwordx2 {vr(vE,2)}, v{vDST}, {ws}, {t3} offen {loc}")
        E(stamp("D_st"))
        ndm=[i for i,x in enumerate(seq) if x==-1][1]
        a(f"s_waitcnt vmcnt({n0+3-1-ndm+1})")
        a.label(L("join"))
        if stamps:
            a(f"s_cmp_eq_u32 {sstep}, {cfg.get('stamp_step',40)}")
            a(f"s_cbranch_scc0 {L('nostamp')}")
            a("s_waitcnt lgkmcnt(0)")
            a(f"s_lshl_b32 {t0}, {scu}, 9")
            a(f"s_add_u32 {t0}, {t0}, {WS_DBG+w*128}")
            for i in range(len(names)):
                a(f"v_mov_b32 v{vT}, s{ST0+2*i if i<8 else 84+2*(i-8)}")
                a(f"buffer_store_dword v{vT}, off, {ws}, {t0} offset:{4*i}")
            a.label(L("nostamp"))
        a(f"s_add_u32 {sstep}, {sstep}, 1")
        a("s_barrier")
        a(f"s_branch {L('loop')}")
        if w==3:
            a.label(L("nored"))
            a("s_barrier")
            f0,f1=side("b"); E(f0); E(f1)
            a("s_waitcnt vmcnt(0)")
            a(f"s_branch {L('join')}")
        a.label(L("fin"))
        a("s_waitcnt lgkmcnt(0)")
        E(pub)
        if cfg.get("rec"): cfg["rec"](a,3)
        a("s_endpgm")
        E(slow)
    return loop
```

```python
from asmlib import *
from layout import *
import struct, math
def f32(x): return struct.unpack("<I",struct.pack("<f",x))[0]
def lo(r): return int(r[2:].split(":")[0]) if r.startswith("s[") else int(r[1:])
sWS="s[4:7]"; sDBG="s[8:9]"; sROLE="s10"; sMODE="s11"; sTMO="s12"; sW="s13"; sXB="s14"
S_FIRST=16
def emit(a,lst):
    for l in lst: a(l)
def delay(n):
    o=[]
    while n>0:
        k=min(n,16); o.append(f"s_nop {k-1}"); n-=k
    return o
def tmo(): return [f"s_sub_u32 {sTMO}, {sTMO}, 1", "s_cbranch_scc1 L_abort"]
def srd(a, r, karg, nbytes):
    b=lo(r)
    a(f"s_load_dwordx2 {sr(b,2)}, s[0:1], {karg}")
    a(f"s_mov_b32 s{b+2}, {nbytes}")
    a(f"s_mov_b32 s{b+3}, 0x20000")
def dbg_add(a, dword, val, vt, sreg_off=None):
    if sreg_off is None: a(f"v_mov_b32 v{vt}, {4*dword}")
    else:
        a(f"v_mov_b32 v{vt}, {sreg_off}")
        a(f"v_lshlrev_b32 v{vt}, 2, v{vt}")
        a(f"v_add_u32 v{vt}, {4*dword}, v{vt}")
    a(f"v_mov_b32 v{vt+1}, {val}")
    a("s_mov_b64 exec, 1")
    a(f"global_atomic_add v{vt}, v{vt+1}, {sDBG}")
    a("s_mov_b64 exec, -1")
def dbg_wait(a, dword, val, vt, lab, sleep=8):
    a(f"v_mov_b32 v{vt}, {4*dword}")
    a.label(lab)
    a(f"global_load_dword v{vt+1}, v{vt}, {sDBG} sc1")
    emit(a,tmo())
    a("s_waitcnt vmcnt(0)")
    a(f"v_cmp_eq_u32 vcc, {val}, v{vt+1}")
    a(f"s_cbranch_vccnz {lab}_ok")
    a(f"s_sleep {sleep}")
    a(f"s_branch {lab}")
    a.label(lab+"_ok")
def confirm_mode(a, lab, vt, lane="v0"):
    a(f"v_lshlrev_b32 v{vt}, 2, {lane}")
    a.label(lab)
    a(f"global_load_dword v{vt+1}, v{vt}, {sDBG} sc1")
    emit(a,tmo())
    a(f"s_add_u32 s85, {sMODE}, {D_INIT}")
    a(f"s_cmp_eq_u32 {sMODE}, 1")
    a("s_waitcnt vmcnt(0)")
    a(f"s_cbranch_scc1 {lab}_m")
    a(f"v_cmp_eq_u32 vcc, 32, v{vt+1}")
    a("s_and_b32 s86, vcc_lo, vcc_hi")
    a("s_and_b32 s86, s86, 0x01010101")
    a("s_cmp_eq_u32 s86, 0x01010101")
    a(f"s_cbranch_scc1 {lab}_m")
    a(f"v_readlane_b32 s86, v{vt+1}, {D_OVER}")
    for x in range(8):
        a(f"v_readlane_b32 s87, v{vt+1}, {8*x}")
        a("s_add_u32 s86, s86, s87")
    a("s_cmp_eq_u32 s86, 256")
    a("s_cbranch_scc1 L_generic")
    a.label(lab+"_z")
    a("s_sleep 4")
    a(f"s_branch {lab}")
    a.label(lab+"_m")
    a(f"v_readlane_b32 s84, v{vt+1}, s85")
    a("s_and_b32 s86, s84, 0xffff")
    a("s_cmp_eq_u32 s86, 128")
    a(f"s_cbranch_scc0 {lab}_z")
```

```python
from common import *
vL16=1; vZ=2; vFL=3; vTAG=4; vNEG=5; vT=6
vKM=16; vVM=40
vS=52
vP=64
vO=72
vSET=128
vG1=112; vLD=113
SLOT=36864
def gen_g4(a,cfg):
    al=SAlloc(S_FIRST,83); S={}
    for i in range(8): S[f"m{i}"]=al(f"m{i}",2)
    for n in ("h","qt","eh","s","t0","t1","t2","t3","bq","bk","bv","bo","bkm","fg1","fo","fl","cexp","v0","v1","v2","okm","g1"): S[n]=al(n)
    t0,t1,t2,t3,s=S["t0"],S["t1"],S["t2"],S["t3"],S["s"]
    a.label("L4_start")
    a(f"s_lshr_b32 {t0}, {sROLE}, 5")
    a(f"s_lshl_b32 {t0}, {t0}, 3")
    a(f"s_and_b32 {t1}, {sROLE}, 7")
    a(f"s_add_u32 {S['h']}, {t0}, {t1}")
    a(f"s_lshr_b32 {S['qt']}, {sW}, 1")
    a(f"s_and_b32 {S['eh']}, {sW}, 1")
    a(f"v_lshlrev_b32 v{vL16}, 4, v0")
    a(f"v_mov_b32 v{vZ}, 0")
    a(f"s_lshl_b32 {t0}, {S['h']}, 2")
    a(f"s_add_u32 {t0}, {t0}, {sW}")
    a(f"s_lshl_b32 {t0}, {t0}, 6")
    a(f"s_add_u32 {t0}, {t0}, {sXB}")
    a(f"s_add_u32 {t0}, {t0}, {X_CAL}")
    a(f"s_add_u32 {t1}, {t0}, 8192")
    a(f"v_mov_b32 v{vT}, 1")
    a(f"buffer_store_dword v{vT}, v{vZ}, {sWS}, {t0} offen sc1")
    a(f"buffer_store_dword v{vT}, v{vZ}, {sWS}, {t1} offen sc1")
    a(f"s_mov_b32 {t2}, 0")
    a("s_waitcnt vmcnt(0)")
    for k in range(4):
        a("s_mov_b32 s84, 0")
        a("s_mov_b32 s85, 0")
        ls=[f"s_load_dword s84, s[4:5], {t0} glc", f"s_load_dword s85, s[4:5], {t1} glc"]
        emit(a, ls if k%2==0 else ls[::-1])
        a("s_waitcnt lgkmcnt(1)")
        a(f"s_sub_u32 {t3}, s85, s84")
        a("s_waitcnt lgkmcnt(0)")
        a(f"s_add_u32 {t2}, {t2}, {t3}")
    a(f"s_add_u32 {t2}, {t2}, 4")
    a(f"s_lshl_b32 {t2}, {t2}, 16")
    a(f"s_add_u32 {t2}, {t2}, 1")
    srd(a,"s[88:91]",8,10240)
    for i in range(4): a(f"v_mov_b32 v{vKM+i}, {SENT:#x}")
    a(f"s_lshl_b32 {t0}, {S['h']}, 2")
    a(f"s_add_u32 {t0}, {t0}, {sW}")
    a(f"s_lshl_b32 {t1}, {t0}, 6")
    a(f"s_add_u32 {t1}, {t1}, {sXB}")
    a(f"s_add_u32 {t1}, {t1}, {X_FLAG}")
    a(f"v_lshlrev_b32 v{vT+2}, 2, v0")
    a("s_mov_b64 exec, 0xffff")
    a(f"buffer_store_dword v{vZ}, v{vT+2}, {sWS}, {t1} offen sc1")
    a("s_mov_b64 exec, -1")
    for base,n in ((X_C,15),(X_B,23)):
        a(f"s_mul_i32 {t1}, {t0}, {n*1024}")
        a(f"s_add_u32 {t1}, {t1}, {sXB}")
        if base: a(f"s_add_u32 {t1}, {t1}, {base}")
        for i in range(n):
            if i and i%4==0: a(f"s_add_u32 {t1}, {t1}, 4096")
            a(f"buffer_store_dwordx4 {vr(vKM,4)}, v{vL16}, {sWS}, {t1} offen offset:{(i%4)*1024} sc1")
    a(f"s_and_b32 {t1}, {S['h']}, 7")
    a("s_cbranch_scc1 L4_nod")
    a(f"v_and_b32 v{vT+2}, 7, v0")
    a(f"v_lshrrev_b32 v{vT+3}, 3, v0")
    a(f"v_mul_u32_u24 v{vT+2}, 1280, v{vT+2}")
    a(f"v_lshl_add_u32 v{vT+2}, v{vT+3}, 4, v{vT+2}")
    a(f"s_cmp_eq_u32 {sW}, 0")
    a("s_cbranch_scc0 L4_ds")
    a("s_waitcnt lgkmcnt(0)")
    for i in range(10): a(f"buffer_load_dwordx4 {vr(vO+4*i,4)}, v{vT+2}, s[88:91], 0 offen offset:{i*128}")
    a(f"v_mov_b32 v{vT+3}, 0x7fc17fc1")
    a("s_waitcnt vmcnt(0)")
    for i in range(20):
        a(f"v_cmp_eq_u32 vcc, v{vKM}, v{vO+2*i}")
        a(f"v_cndmask_b32 v{vO+2*i}, v{vO+2*i}, v{vT+3}, vcc")
    a("s_branch L4_dw")
    a.label("L4_ds")
    for i in range(20): a(f"v_mov_b64 {vr(vO+2*i,2)}, {vr(vKM,2)}")
    a.label("L4_dw")
    a(f"s_lshl_b32 {t1}, {S['h']}, 13")
    a(f"s_lshl_b32 {t3}, {sW}, 14")
    a(f"s_add_u32 {t1}, {t1}, {t3}")
    a(f"s_add_u32 {t1}, {t1}, {sXB}")
    a(f"s_add_u32 {t1}, {t1}, {X_D}")
    for i in range(10):
        if i and i%4==0: a(f"s_add_u32 {t1}, {t1}, 4096")
        a(f"buffer_store_dwordx4 {vr(vO+4*i,4)}, v{vL16}, {sWS}, {t1} offen offset:{(i%4)*1024} sc1")
    a.label("L4_nod")
    a("s_waitcnt vmcnt(0) lgkmcnt(0)")
    dbg_add(a,D_INIT,t2,vT,sMODE)
    a(f"s_mul_i32 {t0}, {S['h']}, 12288")
    a(f"s_mul_i32 {S['bk']}, {sW}, 3072")
    a(f"s_add_u32 {S['bq']}, {t0}, {S['bk']}")
    a(f"s_mul_i32 {t1}, {S['eh']}, 6144")
    a(f"s_add_u32 {t1}, {t1}, {t0}")
    a(f"s_add_u32 {t0}, {t0}, {sXB}")
    a(f"s_add_u32 {S['bkm']}, {t0}, {X_KVM}")
    a(f"s_lshr_b32 {t1}, {t1}, 1")
    a(f"s_mul_i32 {t0}, {S['qt']}, {192*1024}")
    a(f"s_add_u32 {t0}, {t0}, {t1}")
    a(f"s_add_u32 {S['bo']}, {t0}, {WS_O}")
    for i in range(3):
        o0=(i>>1)*4096+2048+(i&1)*1024; p=3+i; o1=(p>>1)*4096+2048+(p&1)*1024
        a(f"s_mul_i32 {S['v%d'%i]}, {S['eh']}, {o1-o0}")
        a(f"s_add_u32 {S['v%d'%i]}, {S['v%d'%i]}, {o0}")
    a(f"s_lshl_b32 {t0}, {S['h']}, 6")
    a(f"s_add_u32 {t0}, {t0}, {sXB}")
    a(f"s_add_u32 {S['fg1']}, {t0}, {F_G1}")
    a(f"s_lshl_b32 {t0}, {S['h']}, 7")
    a(f"s_add_u32 {t0}, {t0}, {sXB}")
    a(f"s_add_u32 {S['fl']}, {t0}, {F_L}")
    a(f"s_lshl_b32 {t0}, {S['qt']}, 6")
    a(f"s_lshl_b32 {t1}, {S['h']}, 1")
    a(f"s_add_u32 {t0}, {t0}, {t1}")
    a(f"s_add_u32 {t0}, {t0}, {S['eh']}")
    a(f"s_lshl_b32 {t0}, {t0}, 2")
    a(f"s_add_u32 {t0}, {t0}, {sXB}")
    a(f"s_add_u32 {S['fo']}, {t0}, {F_O}")
    a(f"v_min_u32 v{vT}, 8, v0")
    a(f"v_lshlrev_b32 v{vFL}, 2, v{vT}")
    sc=192**-0.5
    a(f"s_mov_b32 {S['cexp']}, {f32(sc*math.log2(math.e)):#x}")
    a(f"v_mov_b32 v{vNEG}, {f32(-1e9/sc):#x}")
    a(f"v_and_b32 v{vT}, 15, v0")
    a(f"s_lshl_b32 {t0}, {S['qt']}, 4")
    a(f"v_add_u32 v{vT}, {t0}, v{vT}")
    a(f"v_lshrrev_b32 v{vT+1}, 4, v0")
    a(f"v_lshlrev_b32 v{vT+1}, 2, v{vT+1}")
    for i in range(8):
        a(f"v_add_u32 v{vT+2}, {16*(i>>2)+(i&3)}, v{vT+1}")
        a(f"v_cmp_le_u32 {S['m%d'%i]}, v{vT+2}, v{vT}")
    a(f"s_mov_b32 {S['g1']}, 0")
    confirm_mode(a,"L4_cm",vT)
    uid=[0]
    ldg=f"buffer_load_dword v{vG1}, v{vFL}, {sWS}, {S['fg1']} offen sc1"
    def wait_g1(seg):
        uid[0]+=1; lab=f"L4_g{uid[0]}"
        a.label(lab)
        a(f"v_cmp_ge_u32 vcc, {seg}, v{vG1}")
        a(f"s_cbranch_vccz {lab}_ok")
        a("s_sleep 2")
        a(ldg)
        emit(a,tmo())
        a("s_waitcnt vmcnt(0)")
        a(f"s_branch {lab}")
        a.label(lab+"_ok")
    def load_set(seg):
        a(f"s_mul_i32 {t0}, {seg}, {SEG_STRIDE}")
        a(f"s_add_u32 {t0}, {t0}, {S['bq']}")
        a(f"s_and_b32 {t1}, {seg}, 3")
        a(f"s_mul_i32 {t1}, {t1}, {SLOT}")
        a(f"s_add_u32 {t1}, {t1}, {S['bk']}")
        for m in (1,2,0):
            a(f"s_add_u32 {t3}, {t0}, {m*(WS_K-WS_Q)}")
            a(f"s_add_u32 m0, {t1}, {m*12288}")
            for f in range(3): a(f"buffer_load_dwordx4 v{vL16}, {sWS}, {t3} offen offset:{f*1024} sc1 lds")
    def flag_l(val):
        uid[0]+=1; lab=f"L4_f{uid[0]}"
        a("s_barrier")
        a(f"s_cmp_eq_u32 {sW}, 0")
        a(f"s_cbranch_scc0 {lab}")
        a(f"v_mov_b32 v{vT}, {val}")
        a(f"s_cmp_eq_u32 {sMODE}, 0")
        a(f"s_cbranch_scc0 {lab}_g")
        a(f"buffer_store_dword v{vT}, v{vZ}, {sWS}, {S['fl']} offen")
        a(f"s_branch {lab}")
        a.label(lab+"_g")
        a(f"buffer_store_dword v{vT}, v{vZ}, {sWS}, {S['fl']} offen sc1")
        a.label(lab)
    a(f"v_mov_b32 v{vG1}, 0")
    for k in range(3):
        a(f"s_mov_b32 {s}, {k}")
        wait_g1(s); load_set(s); a("s_waitcnt vmcnt(0)"); flag_l(k+1)
    a(f"s_mov_b32 {s}, 0")
    D0,D1,Dm=vS,vS+4,vS+8; X,M=vP,vP+4
    mx,tp,sm,e0=vT,vT+1,vT+2,vT+4
    for k in range(1):
        L=lambda n: f"L4_{n}{k}"
        a.label(L("it"))
        Q=lambda ks:vr(vSET+4*ks,4); K=lambda ks,kt:vr(vSET+24+4*(2*ks+kt),4); V=lambda t:vr(vSET+72+4*t,4)
        a(";AUTOLGKM_ON")
        a(f"s_and_b32 {t0}, {s}, 3")
        a(f"s_mul_i32 {t0}, {t0}, {SLOT}")
        a(f"v_add_u32 v{vLD}, {t0}, v{vL16}")
        a(f"v_lshl_add_u32 v{vLD+1}, {S['qt']}, 10, v{vLD}")
        a(f"s_mul_i32 {t1}, {S['eh']}, 6144")
        a(f"v_add_u32 v{vLD+2}, {t1}, v{vLD}")
        for ks in range(6):
            a(f"ds_read_b128 {Q(ks)}, v{vLD+1} offset:{ks*2048}")
            for kt in range(2): a(f"ds_read_b128 {K(ks,kt)}, v{vLD} offset:{12288+(2*ks+kt)*1024}")
        for t in range(6): a(f"ds_read_b128 {V(t)}, v{vLD+2} offset:{24576+t*1024}")
        for ks in range(6):
            for kt in range(2):
                D=vr(vS+4*kt,4)
                a(f"v_mfma_f32_16x16x32_bf16 {D}, {K(ks,kt)}, {Q(ks)}, {D if ks else 0}")
        a("s_waitcnt lgkmcnt(0)")
        a(";AUTOLGKM_OFF")
        a(f"s_and_b32 {t0}, {s}, 3")
        a(f"s_mul_i32 {t0}, {t0}, {KVM_RING}")
        a(f"s_add_u32 {S['okm']}, {t0}, {S['bkm']}")
        a(f"s_bfe_u32 {t0}, {s}, 0x10002")
        a(f"v_mov_b32 v{vTAG}, {t0}")
        for i in range(8): a(f"v_cndmask_b32 v{vS+i}, v{vNEG}, v{vS+i}, {S['m%d'%i]}")
        a.label(L("p"))
        a(f"buffer_load_dwordx4 {vr(vKM,4)}, v{vL16}, {sWS}, {S['okm']} offen sc1")
        emit(a,tmo())
        a("s_waitcnt vmcnt(0)")
        a(f"v_xor_b32 v{vT}, v{vKM}, v{vTAG}")
        a(f"v_and_b32 v{vT}, 1, v{vT}")
        a(f"v_cmp_ne_u32 vcc, 0, v{vT}")
        a(f"s_cbranch_vccz {L('q')}")
        a("s_sleep 2")
        a(f"s_branch {L('p')}")
        a.label(L("q"))
        for f in range(1,6):
            a(f"s_add_u32 {t1}, {S['okm']}, {(f>>1)*4096+(f&1)*1024}")
            a(f"buffer_load_dwordx4 {vr(vKM+4*f,4)}, v{vL16}, {sWS}, {t1} offen sc1")
        for i in range(3):
            a(f"s_add_u32 {t1}, {S['okm']}, {S['v%d'%i]}")
            a(f"buffer_load_dwordx4 {vr(vVM+4*i,4)}, v{vL16}, {sWS}, {t1} offen sc1")
        emit(a,tmo())
        a("s_waitcnt vmcnt(0)")
        a(f"v_xor_b32 v{vT}, v{vKM+4}, v{vTAG}")
        for f in range(2,9): a(f"v_bitop3_b32 v{vT}, v{vT}, v{vKM+4*f}, v{vTAG} bitop3:0xf6")
        a(f"v_and_b32 v{vT}, 1, v{vT}")
        a(f"v_cmp_ne_u32 vcc, 0, v{vT}")
        a(f"s_cbranch_vccnz {L('q')}")
        a("s_barrier")
        a(f"s_add_u32 {t2}, {s}, 3")
        a(f"s_cmp_ge_u32 {t2}, 64")
        a(f"s_cbranch_scc1 {L('n')}")
        wait_g1(t2); load_set(t2); a(ldg)
        a.label(L("n"))
        for ks in range(6):
            a(f"v_mfma_f32_16x16x32_bf16 {vr(Dm,4)}, {vr(vKM+4*ks,4)}, {Q(ks)}, {vr(Dm,4) if ks else 0}")
        a(f"v_max3_f32 v{mx}, v{vS}, v{vS+1}, v{vS+2}")
        a(f"v_max3_f32 v{mx}, v{mx}, v{vS+3}, v{vS+4}")
        a(f"v_max3_f32 v{mx}, v{mx}, v{vS+5}, v{vS+6}")
        a(f"v_max_f32 v{mx}, v{mx}, v{vS+7}")
        for r in range(4): a(f"v_mov_b32 v{e0+r}, v{Dm+r}")
        for r in range(4): a(f"v_permlane32_swap_b32 v{Dm+r}, v{e0+r}")
        for r in range(4): a(f"v_add_f32 v{Dm+r}, v{Dm+r}, v{e0+r}")
        a(f"v_max3_f32 v{mx}, v{mx}, v{Dm}, v{Dm+1}")
        a(f"v_max3_f32 v{mx}, v{mx}, v{Dm+2}, v{Dm+3}")
        def xl(r,op):
            for sw in ("16","32"):
                a(f"v_mov_b32 v{tp}, v{r}")
                a(f"v_permlane{sw}_swap_b32 v{r}, v{tp}")
                a(f"{op} v{r}, v{r}, v{tp}")
        xl(mx,"v_max_f32")
        a(f"v_mul_f32 v{mx}, {S['cexp']}, v{mx}")
        for i in range(12): a(f"v_fma_f32 v{vS+i}, v{vS+i}, {S['cexp']}, -v{mx}")
        for i in range(12): a(f"v_exp_f32 v{vS+i}, v{vS+i}")
        a(f"v_add_f32 v{sm}, v{Dm}, v{Dm+1}")
        a(f"v_add_f32 v{sm}, v{sm}, v{Dm+2}")
        a(f"v_add_f32 v{sm}, v{sm}, v{Dm+3}")
        a(f"v_mul_f32 v{sm}, 0.5, v{sm}")
        for i in range(8): a(f"v_add_f32 v{sm}, v{sm}, v{vS+i}")
        xl(sm,"v_add_f32")
        a(f"v_rcp_f32 v{sm}, v{sm}")
        for i in range(12): a(f"v_mul_f32 v{vS+i}, v{vS+i}, v{sm}")
        for i in range(6): a(f"v_cvt_pk_bf16_f32 v{vP+i}, v{vS+2*i}, v{vS+2*i+1}")
        for t in range(6):
            a(f"v_mfma_f32_16x16x32_bf16 {vr(vO+4*t,4)}, {V(t)}, {vr(X,4)}, 0")
        for t in range(6):
            a(f"v_mfma_f32_16x16x16_bf16 {vr(vO+4*t,4)}, {vr(vVM+2*t,2)}, {vr(M,2)}, {vr(vO+4*t,4)}")
        a(f"s_mul_i32 {t0}, {s}, {SEG_STRIDE}")
        a(f"s_add_u32 {t0}, {t0}, {S['bo']}")
        for i in range(3):
            A=vO+8*i
            for j in range(4): a(f"v_cvt_pk_bf16_f32 v{A+j}, v{A+2*j}, v{A+2*j+1}")
            a(f"buffer_store_dwordx4 {vr(A,4)}, v{vL16}, {sWS}, {t0} offen offset:{i*1024} sc1")
        a(f"s_add_u32 {s}, {s}, 1")
        a(f"v_mov_b32 v{vT+1}, {s}")
        a("s_waitcnt vmcnt(0)")
        a(f"buffer_store_dword v{vT+1}, v{vZ}, {sWS}, {S['fo']} offen sc1")
        a(f"s_cmp_eq_u32 {s}, 64")
        a("s_cbranch_scc1 L4_end")
        a(f"s_add_u32 {t2}, {s}, 3")
        flag_l(t2)
    a("s_branch L4_it0")
    a.label("L4_end")
    if cfg.get("rec"): cfg["rec"](a,3)
    a("s_endpgm")
```

```python
from common import *
vL16=1; vOUT=2; vFL=3; vT=4
vACC=12
vR=20
vRED=116
def wreg(ks,u,n=4,o=0):
    i=(ks*2+u)*4+o
    return ar(i,n) if i<256 else vr(128+i-256,n)
def gen_g5(a,cfg):
    al=SAlloc(S_FIRST,83); S={}
    for n in ("srdW","srdO"): S[n]=al(n,4)
    for n in ("th","cb","s","t0","t1","t2","t3","lw","src","nsrc","flag","out","par"): S[n]=al(n)
    t0,t1,t2,t3,s=S["t0"],S["t1"],S["t2"],S["t3"],S["s"]
    a.label("L5_start")
    a(f"s_lshr_b32 {t0}, {sROLE}, 5")
    a(f"s_sub_u32 {t0}, {t0}, 4")
    a(f"s_lshr_b32 {S['th']}, {t0}, 1")
    a(f"s_and_b32 {t0}, {t0}, 1")
    a(f"s_mul_i32 {t0}, {t0}, 10")
    a(f"s_and_b32 {t1}, {sROLE}, 31")
    a(f"s_add_u32 {t0}, {t0}, {t1}")
    a(f"s_sub_u32 {S['cb']}, {t0}, 18")
    srd(a,S['srdW'],40,7864320)
    srd(a,S['srdO'],80,2048*2560)
    a(f"v_lshlrev_b32 v{vL16}, 4, v0")
    a(f"v_lshrrev_b32 v{vT}, 2, v0")
    a(f"v_and_b32 v{vT+1}, 3, v0")
    a(f"v_mul_u32_u24 v{vT+2}, 1280, v{vT}")
    a(f"v_lshl_add_u32 v{vT+2}, v{vT+1}, 4, v{vT+2}")
    a(f"s_lshl_b32 {S['lw']}, {sW}, 15")
    a(f"v_add_u32 v{vT+3}, {S['lw']}, v{vL16}")
    a(f"s_mul_i32 {t3}, {sW}, {1536*1280}")
    a(f"s_lshl_b32 {t0}, {S['cb']}, 6")
    a(f"s_add_u32 {t3}, {t3}, {t0}")
    a("s_waitcnt lgkmcnt(0)")
    def dma(b):
        for q in range(8):
            a(f"s_add_u32 m0, {S['lw']}, {(b%4)*8192+q*1024}")
            a(f"buffer_load_dwordx4 v{vT+2}, {S['srdW']}, {t3} offen lds")
            a(f"s_add_u32 {t3}, {t3}, {16*1280}")
    if cfg.get("g5_after"): cfg["g5_after"](a)
    for b in range(4): dma(b)
    for b in range(12):
        a(f"s_waitcnt vmcnt({8*min(3,11-b)})")
        for k4 in range(4):
            for u in range(2):
                for hh in range(2):
                    a(f"ds_read_b64_tr_b16 {wreg(4*b+k4,u,2,2*hh)}, v{vT+3} offset:{(b%4)*8192+(2*k4+hh)*1024+8*u}")
        a("s_waitcnt lgkmcnt(0)")
        if b+4<12: dma(b+4)
    if cfg.get("rec"): cfg["rec"](a,1)
    confirm_mode(a,"L5_cm",vT)
    a("s_barrier")
    a(f"v_and_b32 v{vT}, 15, v0")
    a(f"v_lshrrev_b32 v{vT+1}, 4, v0")
    a(f"v_mul_u32_u24 v{vT+2}, 2560, v{vT}")
    a(f"v_lshl_add_u32 v{vOUT}, v{vT+1}, 4, v{vT+2}")
    a(f"v_lshlrev_b32 v{vFL}, 2, v{vT}")
    a(f"s_mul_i32 {t0}, {S['th']}, {16*2560}")
    a(f"s_lshl_b32 {t1}, {S['cb']}, 6")
    a(f"s_add_u32 {S['out']}, {t0}, {t1}")
    a(f"s_lshl_b32 {t0}, {S['th']}, 8")
    a(f"s_lshl_b32 {t1}, {sW}, 6")
    a(f"s_add_u32 {t0}, {t0}, {t1}")
    a(f"s_add_u32 {t0}, {t0}, {sXB}")
    a(f"s_add_u32 {S['flag']}, {t0}, {F_O}")
    a(f"s_mul_i32 {t0}, {S['th']}, {192*1024}")
    a(f"s_mul_i32 {t1}, {sW}, {48*1024}")
    a(f"s_add_u32 {t0}, {t0}, {t1}")
    a(f"s_add_u32 {S['src']}, {t0}, {WS_O}")
    a(f"s_mov_b32 {s}, 0")
    a(f"s_mov_b32 {S['par']}, 0")
    ldf=f"buffer_load_dword v{vT}, v{vFL}, {sWS}, {S['flag']} offen sc1"
    def ld(k,base,first):
        o=[]
        if k%4==0: o.append(f"s_add_u32 {t3}, {base}, {(first+k)*1024}")
        o.append(f"buffer_load_dwordx4 {vr(vR+4*k,4)}, v{vL16}, {sWS}, {t3} offen offset:{(k%4)*1024} sc1")
        return o
    def mm(ks):
        return [f"v_mfma_f32_16x16x32_bf16 {vr(vACC+4*u,4)}, {wreg(ks,u)}, {vr(vR+4*(ks%24),4)}, {vr(vACC+4*u,4) if ks else 0}" for u in range(2)]
    a.label("L5_wait")
    a(ldf)
    emit(a,tmo())
    a("s_waitcnt vmcnt(0)")
    a(f"v_cmp_ge_u32 vcc, {s}, v{vT}")
    a("s_cbranch_vccz L5_prime")
    a("s_sleep 1")
    a("s_branch L5_wait")
    a.label("L5_prime")
    for k in range(24): emit(a,ld(k,S['src'],0))
    a.label("L5_unit")
    a(ldf)
    for k in range(24):
        a("s_waitcnt vmcnt(24)")
        emit(a,mm(k)); emit(a,ld(k,S['src'],24))
    a(f"s_add_u32 {t0}, {s}, 1")
    a(f"s_add_u32 {S['nsrc']}, {S['src']}, {SEG_STRIDE}")
    a("s_waitcnt vmcnt(24)")
    a(f"v_cmp_ge_u32 vcc, {t0}, v{vT}")
    a("s_cbranch_vccnz L5_dry")
    for k in range(24):
        a("s_waitcnt vmcnt(23)")
        emit(a,mm(24+k)); emit(a,ld(k,S['nsrc'],0))
    a(f"s_mov_b32 {t2}, 1")
    a("s_branch L5_red")
    a.label("L5_dry")
    for k in range(24):
        a(f"s_waitcnt vmcnt({23-k})")
        emit(a,mm(24+k))
    a(f"s_mov_b32 {t2}, 0")
    a.label("L5_red")
    a(f"s_lshl_b32 {t0}, {sW}, 11")
    a(f"s_add_u32 {t0}, {t0}, {S['par']}")
    a(f"v_add_u32 v{vT+1}, {t0}, v{vL16}")
    a(f"v_add_u32 v{vT+2}, {S['par']}, v{vL16}")
    for u in range(2): a(f"ds_write_b128 v{vT+1}, {vr(vACC+4*u,4)} offset:{u*1024}")
    a(f"s_and_b32 {t0}, {s}, 3")
    a(f"s_cmp_eq_u32 {t0}, {sW}")
    a("s_waitcnt lgkmcnt(0)")
    a("s_barrier")
    a("s_cbranch_scc0 L5_next")
    a(";AUTOLGKM_ON")
    for u in range(2):
        for w in range(4):
            d=vACC+4*u if w==0 else vRED+4*(w-1)
            a(f"ds_read_b128 {vr(d,4)}, v{vT+2} offset:{w*2048+u*1024}")
        for w in range(1,4):
            for r in range(4): a(f"v_add_f32 v{vACC+4*u+r}, v{vACC+4*u+r}, v{vRED+4*(w-1)+r}")
    a(";AUTOLGKM_OFF")
    for k in range(4): a(f"v_cvt_pk_bf16_f32 v{vT+4+k}, v{vACC+2*k}, v{vACC+2*k+1}")
    a(f"buffer_store_dwordx4 {vr(vT+4,4)}, v{vOUT}, {S['srdO']}, {S['out']} offen")
    a.label("L5_next")
    a(f"s_xor_b32 {S['par']}, {S['par']}, 8192")
    a(f"s_add_u32 {S['out']}, {S['out']}, {32*2560}")
    a(f"s_mov_b32 {S['src']}, {S['nsrc']}")
    a(f"s_add_u32 {s}, {s}, 1")
    a(f"s_cmp_eq_u32 {t2}, 1")
    a("s_cbranch_scc1 L5_unit")
    a(f"s_cmp_lt_u32 {s}, 64")
    a("s_cbranch_scc1 L5_wait")
    if cfg.get("rec"): cfg["rec"](a,3)
    a("s_endpgm")
```

```python
from common import *
XSLOT=40960
vL16=1; vX=2; vXOFF=3; vOUT=4; vZ=5; vTR=6
vT=10; vXR=15
vF=16
vACC=48
def wreg(ks,t):
    i=(ks*4+t)*4
    return ar(i,4) if i<256 else vr(192+i-256,4)
def wreg2(ks,t,hh):
    i=(ks*4+t)*4+2*hh
    return ar(i,2) if i<256 else vr(192+i-256,2)
def gemm_sregs():
    al=SAlloc(S_FIRST,83); S={}
    for n in ("srdW","srdX","srdO"): S[n]=al(n,4)
    for n in ("wstr","wcol","perm","xb","s0","s1","out","ostep","d0","d1","d2","d3","flag","vmode","phase","wflav",
              "s","t0","t1","t2","t3","slot","xw","lw","idx","sto","lst","wo","w8"): S[n]=al(n)
    return S

def gen_gemm(a,S,cfg,after_prologue,at_end):
    t0,t1,t2,t3=S["t0"],S["t1"],S["t2"],S["t3"]
    a.label("Lg_start")
    a(f"v_lshlrev_b32 v{vL16}, 4, v0")
    a(f"v_mov_b32 v{vZ}, 0")
    a(f"v_lshrrev_b32 v{vT}, 3, v0")
    a(f"v_and_b32 v{vT+1}, 7, v0")
    a(f"v_xor_b32 v{vT+1}, v{vT+1}, v{vT}")
    a(f"v_mul_lo_u32 v{vT}, v{vT}, {S['wstr']}")
    a(f"v_lshl_add_u32 v{vX}, v{vT+1}, 4, v{vT}")
    a(f"v_lshrrev_b32 v{vT}, 4, v0")
    a(f"v_bfe_u32 v{vT+1}, v0, 2, 2")
    a(f"v_and_b32 v{vT+2}, 3, v0")
    a(f"v_lshl_add_u32 v{vT}, v{vT}, 3, v{vT+1}")
    a(f"s_lshl_b32 {S['lst']}, {sW}, 14")
    a(f"s_add_u32 {S['lst']}, {S['lst']}, {2*XSLOT}")
    a(f"v_lshl_add_u32 v{vT}, v{vT}, 7, {S['lst']}")
    a(f"s_cmp_eq_u32 {S['perm']}, 0")
    a(f"s_cselect_b64 vcc, -1, 0")
    for p in range(2):
        for u in range(2):
            a(f"v_lshrrev_b32 v{vT+3}, 1, v{vT+2}")
            a(f"v_add_u32 v{vT+3}, {2*u}, v{vT+3}")
            a(f"v_cndmask_b32 v{vT+3}, v{vT+2}, v{vT+3}, vcc")
            a(f"v_add_u32 v{vT+3}, {4*p}, v{vT+3}")
            a(f"v_xor_b32 v{vT+3}, v{vT+3}, v{vT+1}")
            a(f"v_lshl_add_u32 v{vT+3}, v{vT+3}, 4, v{vT}")
            a(f"v_and_b32 v{vT+4}, 1, v{vT+2}")
            a(f"v_cndmask_b32 v{vT+4}, {u}, v{vT+4}, vcc")
            a(f"v_lshl_add_u32 v{vTR+2*p+u}, v{vT+4}, 3, v{vT+3}")
    a(f"s_and_b32 {t0}, {sW}, 1")
    a(f"s_lshr_b32 {t1}, {sW}, 1")
    a(f"s_lshl_b32 {t2}, {t1}, 2")
    a(f"v_lshrrev_b32 v{vT}, 4, v0")
    a(f"v_add_u32 v{vT+1}, {t2}, v{vT}")
    a(f"v_and_b32 v{vT+2}, 7, v0")
    a(f"v_xor_b32 v{vT+1}, v{vT+1}, v{vT+2}")
    a(f"v_lshrrev_b32 v{vT+2}, 3, v0")
    a(f"v_mul_u32_u24 v{vT+2}, 1280, v{vT+2}")
    a(f"v_lshl_add_u32 v{vXOFF}, v{vT+1}, 4, v{vT+2}")
    a(f"v_and_b32 v{vT+1}, 15, v0")
    a(f"v_lshrrev_b32 v{vT+2}, 1, v{vT+1}")
    a(f"v_xor_b32 v{vT+2}, v{vT+2}, v{vT}")
    a(f"v_lshlrev_b32 v{vT+1}, 7, v{vT+1}")
    a(f"v_lshl_add_u32 v{vXR}, v{vT+2}, 4, v{vT+1}")
    a(f"s_lshl_b32 {t2}, {t0}, 1")
    a(f"s_add_u32 {t2}, {t2}, {t1}")
    a(f"s_lshl_b32 {S['lw']}, {t2}, 10")
    a(f"s_mul_i32 {t2}, {t2}, 10240")
    a(f"s_add_u32 {S['xw']}, {t2}, {S['xb']}")
    def xdma(seg,slot):
        o=[f"s_sub_u32 {t0}, {S['s1']}, 1", f"s_min_u32 {t0}, {t0}, {seg}", f"s_mul_i32 {t0}, {t0}, {XSLOT}", f"s_add_u32 {t0}, {t0}, {S['xw']}",
           f"s_add_u32 {t1}, {slot}, {S['lw']}"]
        for k in range(10):
            o+=[f"s_add_u32 m0, {t1}, {k*(4096-128)}", f"buffer_load_dwordx4 v{vXOFF}, {S['srdX']}, {t0} offen offset:{k*128} {cfg.get('xflav','sc1')} lds"]
        return o
    s=S["s"]
    a(f"s_mov_b32 {s}, {S['s0']}")
    a(f"s_mov_b32 {S['slot']}, 0")
    def xfirst():
        emit(a,xdma(s,S['slot']))
        a(f"s_add_u32 {t2}, {s}, 1")
        a(f"s_mov_b32 {t3}, {XSLOT}")
        emit(a,xdma(t2,t3))
    a(f"s_lshl_b32 {S['w8']}, {S['wstr']}, 3")
    a(f"s_mov_b32 {S['wo']}, {S['wcol']}")
    wfl=cfg.get("g1_wflav","nt")
    def dma(b):
        for q in range(8):
            a(f"s_add_u32 m0, {S['lst']}, {(b%2)*8192+q*1024}")
            a(f"buffer_load_dwordx4 v{vX}, {S['srdW']}, {S['wo']} offen {wfl} lds")
            a(f"s_add_u32 {S['wo']}, {S['wo']}, {S['w8']}")
    for b in range(2): dma(b)
    for b in range(10):
        a(f"s_waitcnt vmcnt({8*min(1,9-b)})")
        for k2 in range(2):
            for t in range(4):
                for hh in range(2):
                    p,u=t>>1,t&1
                    a(f"ds_read_b64_tr_b16 {wreg2(2*b+k2,t,hh)}, v{vTR+2*(p^hh)+u} offset:{(b%2)*8192+(32*k2+4*hh)*128}")
        a("s_waitcnt lgkmcnt(0)")
        if b==7:
            a(f"s_cmp_eq_u32 {S['phase']}, 3")
            a("s_cbranch_scc1 Lg_nx")
            xfirst()
            a.label("Lg_nx")
        if b+2<10: dma(b+2)
    after_prologue(a,xfirst)
    a(f"s_mov_b32 {S['sto']}, {OOB}")
    a("s_waitcnt vmcnt(10)")
    a(f"s_cmp_eq_u32 {S['vmode']}, 1")
    a("s_cbranch_scc1 Lg_V0")
    a(f"s_cmp_eq_u32 {S['vmode']}, 2")
    a("s_cbranch_scc1 Lg_R0")
    for nm,vm,ofl in (("Lg_K",0,"sc1"),("Lg_V",1,"sc1"),("Lg_R",0,"")):
        acc=lambda par,t,tt: vACC+32*par+((t*2+tt) if vm else ((t>>1)*4+tt*2+(t&1)))*4
        def epi(par):
            o=[]
            for i in range(4):
                A=vACC+32*par+8*i
                o+=[f"v_cvt_pk_bf16_f32 v{A+k}, v{A+2*k}, v{A+2*k+1}" for k in range(4)]
                o+=[f"s_add_u32 {t3}, {S['sto']}, {S['d%d'%i]}", f"buffer_store_dwordx4 {vr(A,4)}, v{vOUT}, {S['srdO']}, {t3} offen {ofl}"]
            return o
        flagst=[f"v_mov_b32 v{vT}, {s}", f"buffer_store_dword v{vT}, v{vZ}, {sWS}, {S['flag']} offen sc1"]
        for par in range(2):
            a.label(f"{nm}{par}")
            a(";AUTOLGKM_ON")
            a(f"v_add_u32 v{vX}, {S['slot']}, v{vXR}")
            a(f"v_xor_b32 v{vTR+1}, 64, v{vX}")
            a("s_barrier")
            rd=lambda f: f"ds_read_b128 {vr(vF+4*(f%8),4)}, v{vTR+1 if (f>>1)&1 else vX} offset:{(f>>2)*4096+(f&1)*2048}"
            for f in range(6): a(rd(f))
            fill=[f"s_sub_u32 {t2}, {S['slot']}, {XSLOT}", f"s_cselect_b32 {S['idx']}, {2*XSLOT}, {t2}", f"s_add_u32 {t2}, {s}, 2"]
            fill+=epi(par^1)+xdma(t2,S['idx'])
            if cfg.get("g_nost"): fill=[x for x in fill if "buffer_store" not in x]
            if cfg.get("g_nodma"): fill=[x for x in fill if "buffer_load" not in x]
            main=[]
            for f in range(40):
                ks,tt=f>>1,f&1
                for t in range(4):
                    W=wreg(ks,t); X=vr(vF+4*(f%8),4); D=vr(acc(par,t,tt),4)
                    m=f"v_mfma_f32_16x16x32_bf16 {D}, {X if vm else W}, {W if vm else X}, {D if ks else 0}"
                    if t==3 and f+6<40: m+="\n"+rd(f+6)
                    if f==cfg.get('g1_flagat',36) and t==0: m+="\ns_waitcnt vmcnt(10)\n"+"\n".join(flagst)
                    main.append(m)
            body=[]; k=0; hold=0
            for i,m in enumerate(main):
                body.append(m)
                if i>=2 and i%4!=3 and i>=hold:
                    for _ in range(2):
                        if k<len(fill):
                            body.append(fill[k]); k+=1
                            if "m0" in fill[k-1]: break
                            if "buffer_" in fill[k-1]: hold=i+6; break
                if i==131: assert k==len(fill)
            assert k==len(fill)
            emit(a,body)
            a(";AUTOLGKM_OFF")
            a(f"s_sub_u32 {t0}, {s}, {S['s0']}")
            a(f"s_mul_i32 {t0}, {t0}, {S['ostep']}")
            a(f"s_add_u32 {S['sto']}, {t0}, {S['out']}")
            a(f"s_add_u32 {S['slot']}, {S['slot']}, {XSLOT}")
            a(f"s_cmp_eq_u32 {S['slot']}, {3*XSLOT}")
            a(f"s_cselect_b32 {S['slot']}, 0, {S['slot']}")
            a(f"s_add_u32 {s}, {s}, 1")
            a(f"s_cmp_lt_u32 {s}, {S['s1']}")
            if par==0: a(f"s_cbranch_scc0 {nm}e0")
            else: a(f"s_cbranch_scc1 {nm}0")
        for par in (1,0):
            a.label(f"{nm}e{par}")
            emit(a,epi(par))
            a("s_branch Lg_end")
    a.label("Lg_end")
    a("s_waitcnt vmcnt(0)")
    a(f"v_mov_b32 v{vT}, {s}")
    a(f"buffer_store_dword v{vT}, v{vZ}, {sWS}, {S['flag']} offen sc1")
    at_end(a)

def setup_g1(a,S):
    t0,t1,t2,t3=S["t0"],S["t1"],S["t2"],S["t3"]
    a(f"s_mul_i32 {t0}, {S['idx']}, 2731")
    a(f"s_lshr_b32 {t0}, {t0}, 16")
    a(f"s_mul_i32 {t1}, {t0}, 24")
    a(f"s_sub_u32 {t1}, {S['idx']}, {t1}")
    a(f"s_lshl_b32 {t1}, {t1}, 2")
    a(f"s_add_u32 {t1}, {t1}, {sW}")
    a(f"s_add_u32 {t0}, {t0}, 1")
    a(f"s_cmp_eq_u32 {t0}, 3")
    a(f"s_cselect_b32 {t0}, 0, {t0}")
    b=lo(S['srdW'])
    a(f"s_load_dwordx4 s[88:91], s[0:1], 16")
    a(f"s_load_dwordx2 s[92:93], s[0:1], 32")
    srd(a,S['srdX'],0,2621440)
    a("s_waitcnt lgkmcnt(0)")
    a(f"s_cmp_eq_u32 {t0}, 1")
    a(f"s_cselect_b64 {sr(b,2)}, s[90:91], s[88:89]")
    a(f"s_cmp_eq_u32 {t0}, 2")
    a(f"s_cselect_b64 {sr(b,2)}, s[92:93], {sr(b,2)}")
    a(f"s_cselect_b32 {S['vmode']}, 1, 0")
    a(f"s_mov_b32 s{b+2}, 7864320")
    a(f"s_mov_b32 s{b+3}, 0x20000")
    o=lo(S['srdO'])
    a(f"s_mov_b64 {sr(o,2)}, s[4:5]")
    a(f"s_mov_b32 s{o+2}, {WS_BYTES}")
    a(f"s_mov_b32 s{o+3}, 0x20000")
    a(f"s_mov_b32 {S['wstr']}, 12288")
    a(f"s_lshl_b32 {S['wcol']}, {t1}, 7")
    a(f"s_mov_b32 {S['perm']}, 0")
    a(f"s_mov_b32 {S['xb']}, 0")
    a(f"s_mov_b32 {S['s0']}, 0")
    a(f"s_mov_b32 {S['s1']}, 64")
    a(f"s_mul_i32 {t2}, {t0}, {WS_K-WS_Q}")
    a(f"s_lshl_b32 {t3}, {t1}, 12")
    a(f"s_add_u32 {S['out']}, {t2}, {t3}")
    a(f"s_mov_b32 {S['ostep']}, {SEG_STRIDE}")
    for i in range(4): a(f"s_mov_b32 {S['d%d'%i]}, {1024*i}")
    a(f"s_mul_i32 {t2}, {t1}, 21846")
    a(f"s_lshr_b32 {t2}, {t2}, 16")
    a(f"s_mul_i32 {t3}, {t2}, 13")
    a(f"s_add_u32 {t3}, {t3}, {t1}")
    a(f"s_mul_i32 {t0}, {t0}, 3")
    a(f"s_add_u32 {t3}, {t3}, {t0}")
    a(f"s_lshl_b32 {t3}, {t3}, 2")
    a(f"s_add_u32 {t3}, {t3}, {sXB}")
    a(f"s_add_u32 {S['flag']}, {t3}, {F_G1}")
    a(f"s_mov_b32 {S['phase']}, 0")
    a(f"v_lshlrev_b32 v{vOUT}, 4, v0")
```

```python
WS_Q=0x0000000; WS_K=0x1800000; WS_V=0x3000000; WS_O=0x4800000
SEG_STRIDE=192*2048
NCU=96
WS_BQKV=0x6000000; WS_BO=0x6800000
WS_X=0x7000000
XMODE=0x800000
X_C =0x000000
CCOPY=5*16384; CRING=8*CCOPY
X_CAL=0x1E0000
X_B =0x200000
SB=3200
X_KVM=0x300000
KVM_RING=NCU*4096
X_A =0x480000
X_D =0x500000
X_FLAG=0x540000
F_G1=X_FLAG+0x0000
F_O =X_FLAG+0x0800
F_L =X_FLAG+0x1000
WS_DBG=0x8000000
WS_BYTES=268435456
SENT=0x7F817F81
OOB=0x40000000
D_OVER=1
D_INIT=10
D_B1=18; D_B2=26
D_ABORT=4
D_CNT=41
```

```python
import sys
sys.path.insert(0,"gen")
from common import *
import gemm, g4, g5, bpart, chain3
NAME="concat_heads__memory_aug_recurrent_mem_tr__sliding_local_dilated__prompt"
LDS=163840

def build(cfg):
    a=Asm()
    roles=cfg.get("roles","c415b")
    if cfg.get("rec_on"):
        def rec(a,slot):
            a("s_memrealtime s[96:97]")
            a("s_memtime s[98:99]")
            a(f"s_lshl_b32 s100, {sROLE}, 5")
            a(f"s_add_u32 s100, s100, {WS_DBG+0x20000+slot*4}")
            a("s_waitcnt lgkmcnt(0)" if slot<3 else "s_waitcnt vmcnt(0) lgkmcnt(0)")
            a("v_mov_b32 v126, s96")
            a(f"buffer_store_dword v126, off, {sWS}, s100")
            a("v_mov_b32 v127, s98")
            a(f"buffer_store_dword v127, off, {sWS}, s100 offset:16")
            if slot==0:
                a("v_mov_b32 v125, s94")
                a("s_add_u32 s100, s100, 0x4000")
                a(f"buffer_store_dword v125, off, {sWS}, s100")
            if slot==3 and cfg.get("count") and cfg.get("_inchain"):
                a(f"s_lshl_b32 s100, {sROLE}, 2")
                a(f"s_add_u32 s100, s100, {sW}")
                a(f"s_lshl_b32 s100, s100, 4")
                a(f"s_add_u32 s100, s100, {WS_DBG+0x30000}")
                for i,n in enumerate(("nA","nB","nC","nD")): a(f"v_mov_b32 v{20+i}, {cfg['chainS'][n]}")
                a(f"buffer_store_dwordx4 v[20:23], off, {sWS}, s100")
        cfg["rec"]=rec
    a("s_cmp_ge_u32 s2, 256")
    a("s_cbranch_scc1 L_exit")
    if cfg.get("rec_on"): a("s_memrealtime s[94:95]")
    a("s_load_dwordx2 s[4:5], s[0:1], 96")
    a(f"s_load_dwordx2 {sDBG}, s[0:1], 88")
    a(f"s_mov_b32 s6, {WS_BYTES}")
    a("s_mov_b32 s7, 0x20000")
    a("v_lshrrev_b32 v1, 6, v0")
    a("v_and_b32 v0, 63, v0")
    a(f"v_readfirstlane_b32 {sW}, v1")
    a("s_getreg_b32 s16, hwreg(HW_REG_XCC_ID)")
    a("s_and_b32 s16, s16, 15")
    a(f"s_mov_b32 {sTMO}, {cfg.get('timeout',300000)}")
    a(f"s_mov_b32 {sMODE}, 0")
    a(f"v_mov_b32 v5, {LDS-4}")
    a(f"s_cmp_eq_u32 {sW}, 0")
    a("s_waitcnt lgkmcnt(0)")
    a("s_cbranch_scc0 L_t1")
    a("s_lshl_b32 s17, s16, 5")
    a("s_cmp_ge_u32 s16, 8")
    a(f"s_cselect_b32 s17, {4*D_OVER}, s17")
    a("v_mov_b32 v1, s17")
    a("v_mov_b32 v2, 1")
    a("s_mov_b64 exec, 1")
    a(f"global_atomic_add v3, v1, v2, {sDBG} sc0")
    a("s_waitcnt vmcnt(0)")
    a("ds_write_b32 v5, v3")
    a("s_waitcnt lgkmcnt(0)")
    a("s_mov_b64 exec, -1")
    a.label("L_t1")
    a("s_barrier")
    a("ds_read_b32 v3, v5")
    a("s_waitcnt lgkmcnt(0)")
    a("v_readfirstlane_b32 s17, v3")
    a(f"s_lshl_b32 {sROLE}, s16, 5")
    a(f"s_add_u32 {sROLE}, {sROLE}, s17")
    a("s_cmp_ge_u32 s17, 32")
    a("s_cbranch_scc1 L_generic")
    a("s_cmp_ge_u32 s16, 8")
    a("s_cbranch_scc1 L_generic")
    if cfg.get("force_generic")==1: a("s_branch L_generic")
    a.label("L_dispatch")
    if cfg.get("rec"): cfg["rec"](a,0)
    a(f"s_mul_i32 {sXB}, {sMODE}, {XMODE}")
    a(f"s_add_u32 {sXB}, {sXB}, {WS_X}")
    a(f"s_and_b32 s17, {sROLE}, 31")
    a(f"s_cmp_ge_u32 {sROLE}, 128")
    a("s_cbranch_scc1 L_side")
    a("s_cmp_lt_u32 s17, 24")
    a(f"s_cbranch_scc1 {'Lc_start' if 'c' in roles else 'L_exit'}")
    a(f"s_branch {'L4_start' if '4' in roles else 'L_exit'}")
    a.label("L_side")
    a("s_cmp_lt_u32 s17, 18")
    a(f"s_cbranch_scc1 {'L1_start' if '1' in roles else 'L_exit'}")
    a("s_cmp_lt_u32 s17, 28")
    a(f"s_cbranch_scc1 {'L5_start' if '5' in roles else 'L_exit'}")
    a(f"s_branch {'Lb_start' if 'b' in roles else 'L_exit'}")
    a.label("L_generic")
    a("s_waitcnt vmcnt(0) lgkmcnt(0)")
    a("s_barrier")
    a(f"s_mov_b32 {sMODE}, 1")
    a(f"s_mov_b32 {sROLE}, s2")
    a("v_mbcnt_lo_u32_b32 v0, -1, 0")
    a("v_mbcnt_hi_u32_b32 v0, -1, v0")
    a("s_branch L_dispatch")
    a.label("L_abort")
    dbg_add(a,D_ABORT,1,0)
    a(f"v_mov_b32 v1, {sROLE}")
    a(f"global_store_dword v0, v1, {sDBG} offset:4")
    a.label("L_exit")
    a("s_endpgm")
    loop=None
    if 'c' in roles:
        loop=chain3.gen_chain(a,cfg)
        cfg["_inchain"]=True
        for w in range(4): loop(cfg.get("modes",(0,1))[0],w)
        cfg["_inchain"]=False
    if '4' in roles: g4.gen_g4(a,cfg)
    if '1' in roles or 'b' in roles:
        S=gemm.gemm_sregs()
        a.label("Lb_start")
        bpart.setup_b(a,S,1)
        a("s_branch Lg_start")
        a.label("L1_start")
        a(f"s_lshr_b32 {S['t0']}, {sROLE}, 5")
        a(f"s_sub_u32 {S['t0']}, {S['t0']}, 4")
        a(f"s_mul_i32 {S['t0']}, {S['t0']}, 18")
        a(f"s_add_u32 {S['idx']}, {S['t0']}, s17")
        gemm.setup_g1(a,S)
        def after(a,xfirst):
            a(f"s_cmp_eq_u32 {S['phase']}, 3")
            a("s_cbranch_scc1 Lg_w3")
            if cfg.get("rec"): cfg["rec"](a,1)
            confirm_mode(a,"Lg_cm",10)
            a("s_branch Lg_w0")
            a.label("Lg_w3")
            dbg_wait(a,D_B2,16,10,"Lg_b2")
            xfirst()
            a.label("Lg_w0")
        def at_end(a):
            a(f"s_cmp_eq_u32 {S['phase']}, 1")
            a("s_cbranch_scc1 Lb_p2")
            if cfg.get("rec"): cfg["rec"](a,3)
            a("s_endpgm")
        gemm.gen_gemm(a,S,cfg,after,at_end)
        a.label("Lb_p2")
        def arrive(d,lab):
            a("s_waitcnt vmcnt(0)")
            a("s_barrier")
            a(f"s_cmp_eq_u32 {sW}, 0")
            a(f"s_cbranch_scc0 {lab}")
            a("buffer_wbl2 sc1")
            a("s_waitcnt vmcnt(0)")
            dbg_add(a,d,1,10)
            a.label(lab)
        arrive(D_B1,"Lb_a1")
        if cfg.get("rec"): cfg["rec"](a,1)
        dbg_wait(a,D_B1,16,10,"Lb_w1")
        bpart.gen_battn(a,S)
        arrive(D_B2,"Lb_a2")
        if cfg.get("rec"): cfg["rec"](a,2)
        a(f"s_cmp_eq_u32 {S['wflav']}, 15")
        a("s_cbranch_scc1 L_exit")
        bpart.setup_b(a,S,3)
        a("s_branch Lg_start")
    if '5' in roles: g5.gen_g5(a,cfg)
    if loop and len(cfg.get("modes",(0,1)))>1:
        cfg["_inchain"]=True
        for w in range(4): loop(1,w)
    return a.finish(cfg.get("verbose",False))

def full_file(cfg):
    ref=open(f"cdna_kernels/{NAME}.s.ref").read().split("\n")
    head=[l for l in ref if l.startswith(";") and "@launch" not in l and "Override launch" not in l and "grid=ceil" not in l]
    out="\n".join(head)+f"\n; @launch grid=(256,1,1) block=(256,1,1) lds={LDS}\n"
    out+=cfg.get("banner","")
    out+=f""".amdgcn_target "amdgcn-amd-amdhsa--gfx950"
.text
.globl {NAME}_kernel
.p2align 8
.type {NAME}_kernel,@function
{NAME}_kernel:
"""
    out+=build(cfg)
    out+=f""".section .rodata,"a"
.p2align 6
.amdhsa_kernel {NAME}_kernel
  .amdhsa_next_free_vgpr 512
  .amdhsa_next_free_sgpr 102
  .amdhsa_accum_offset 256
  .amdhsa_group_segment_fixed_size 0
  .amdhsa_kernarg_size 104
  .amdhsa_user_sgpr_count 2
  .amdhsa_user_sgpr_kernarg_segment_ptr 1
  .amdhsa_system_sgpr_workgroup_id_x 1
.end_amdhsa_kernel
"""
    return out

if __name__=="__main__":
    cfg={"verbose":True}
    if len(sys.argv)>2: cfg.update(eval(sys.argv[2]))
    path=sys.argv[1] if len(sys.argv)>1 else f"cdna_kernels/{NAME}.s"
    open(path,"w").write(full_file(cfg))
    print("wrote",path)
```

```python
import re

TRANS = ("v_exp_f32","v_log_f32","v_rcp_f32","v_rsq_f32","v_sqrt_f32","v_sin_f32","v_cos_f32","v_rcp_iflag_f32")
_reg_re = re.compile(r"^(-|\|)?(?:abs\()?([vas])(\d+)\)?\|?$")
_rng_re = re.compile(r"^(-|\|)?([vas])\[(\d+):(\d+)\]\|?$")

def regs_of(op):
    op = op.strip()
    m = _reg_re.match(op)
    if m: return {(m.group(2), int(m.group(3)))}
    m = _rng_re.match(op)
    if m: return {(m.group(2), i) for i in range(int(m.group(3)), int(m.group(4))+1)}
    if op == "vcc": return {("s","vcc_lo"),("s","vcc_hi")}
    if op in ("vcc_lo","vcc_hi"): return {("s",op)}
    if op == "exec": return {("x","exec")}
    if op in ("exec_lo","exec_hi"): return {("x","exec")}
    if op == "m0": return {("x","m0")}
    return set()

class Ins:
    __slots__ = ("text","op","ops","kind","dst","src","srcC","srcAB","passes","label","target","ws","dpp","wide","uncond")
    def __init__(self, text):
        self.text = text
        t = text.split(";")[0].strip()
        self.label = None; self.target=None; self.kind="other"; self.dst=set(); self.src=set()
        self.srcC=set(); self.srcAB=set(); self.passes=0; self.ws=1; self.dpp=False; self.wide=set(); self.uncond=False
        self.op=""; self.ops=[]
        if not t or t.startswith("."):
            self.kind="dir"; self.ws=0; return
        if t.endswith(":"):
            self.kind="label"; self.label=t[:-1]; self.ws=0; return
        parts = t.split(None,1)
        op = parts[0]; self.op=op
        rest = parts[1] if len(parts)>1 else ""
        ops=[]; cur=""; depth=0
        for ch in rest:
            if ch in "[(": depth+=1
            if ch in "])": depth-=1
            if ch=="," and depth==0: ops.append(cur.strip()); cur=""
            else: cur+=ch
        if cur.strip(): ops.append(cur.strip())
        mods=""
        if ops:
            last = ops[-1].split(None,1)
            ops[-1]=last[0]
            if len(last)>1: mods=last[1]
        self.ops=ops
        R=[regs_of(o) for o in ops]
        U=lambda l: set().union(*l) if l else set()
        if op=="s_nop":
            self.kind="nop"; self.ws=int(ops[0],0)+1
        elif op.startswith("s_cbranch") or op=="s_branch":
            self.kind="branch"; self.target=ops[0]; self.uncond=(op=="s_branch")
        elif op=="s_endpgm":
            self.kind="end"; self.uncond=True
        elif op.startswith("v_mfma") or op.startswith("v_smfmac"):
            self.kind="mfma"; self.dst=R[0]
            self.passes = 8 if "32x32" in op else (2 if "4x4" in op else 4)
            if op.startswith("v_smfmac"):
                self.srcC=R[0]; self.srcAB=R[1]|R[2]|R[3]
            else:
                self.srcC=R[3]; self.srcAB=R[1]|R[2]
            self.src=self.srcC|self.srcAB
        elif op.startswith("v_"):
            self.kind="valu"
            self.dpp = ("_dpp" in op) or ("row_" in mods) or ("quad_perm" in mods)
            if op.startswith("v_permlane") and "swap" in op:
                self.dst=R[0]|R[1]; self.src=R[0]|R[1]
            elif op.startswith("v_cmp"):
                self.dst=R[0]; self.src=U(R[1:])
                if op.startswith("v_cmpx"): self.dst=self.dst|{("x","exec")}
            elif re.match(r"v_(add|sub|subrev|addc|subb)_co", op) or op.startswith("v_mad_u64") or op.startswith("v_div_scale"):
                self.dst=R[0]|R[1]; self.src=U(R[2:])
            else:
                self.dst=R[0]; self.src=U(R[1:])
                if op.startswith(("v_fmac","v_dot2c","v_writelane")) or self.dpp: self.src=self.src|R[0]
        elif op.startswith("ds_"):
            self.kind="ds"
            if op.startswith(("ds_read","ds_bpermute","ds_permute","ds_swizzle")) or "_rtn" in op:
                self.dst=R[0]; self.src=U(R[1:])
            else: self.src=U(R)
        elif op.startswith(("global_","buffer_","flat_")):
            self.kind="vmem"
            lds = ("_lds_" in op) or re.search(r"\blds\b", mods) is not None
            if op.startswith(("buffer_inv","buffer_wbl2")): pass
            elif lds:
                self.src=U(R)|{("x","m0")}
            elif "load" in op:
                self.dst=R[0]; self.src=U(R[1:])
            elif "atomic" in op:
                if op.startswith("global_") and len(ops)==4: self.dst=R[0]; self.src=U(R[1:])
                else:
                    self.src=U(R)
                    if op.startswith("buffer_") and "sc0" in mods: self.dst=R[0]
            else:
                self.src=U(R)
                if "x3" in op or "x4" in op:
                    self.wide = R[1] if op.startswith("global_") else R[0]
        elif op.startswith("s_"):
            self.kind="salu"
            if op.startswith(("s_cmp","s_waitcnt","s_barrier","s_sleep","s_setprio","s_bitcmp","s_setreg")):
                self.src=U(R)
            else:
                self.dst=R[0] if R else set(); self.src=U(R[1:])
                if "saveexec" in op: self.dst=self.dst|{("x","exec")}

def isv(rs): return {r for r in rs if r[0] in "va"}
def iss(rs): return {r for r in rs if r[0]=="s"}

def need(p, c):
    n=0
    if p.kind=="valu":
        pv=isv(p.dst); ps=iss(p.dst)
        if c.kind=="mfma" and pv & c.src: n=max(n,2)
        if c.kind=="valu":
            if pv & c.src:
                if c.dpp: n=max(n,2)
                if c.op.startswith("v_permlane"): n=max(n,2)
                if c.op.startswith(("v_readlane","v_readfirstlane")): n=max(n,1)
                if p.op.startswith(TRANS) : n=max(n,1)
                if "sdwa" in p.op or ("op_sel" in p.text and not p.op.startswith("v_pk_")): n=max(n,1)
            if ps & c.src:
                n=max(n,4 if c.op.startswith(("v_readlane","v_writelane","v_div_fmas")) else 2)
            if c.op.startswith("v_div_fmas") and ("s","vcc_lo") in ps: n=max(n,4)
        if p.op.startswith("v_dot") and c.kind in ("valu","vmem","ds","mfma") and pv & (c.src|c.dst):
            if c.op!=p.op: n=max(n,3)
            elif pv & (regs_of(c.ops[1])|regs_of(c.ops[2])): n=max(n,3)
        if c.kind=="vmem" and ps & c.src: n=max(n,5)
        if c.kind=="salu" and ps & c.src: n=max(n,1)
        if ("x","exec") in p.dst:
            if c.kind=="mfma": n=max(n,4)
            if c.kind=="valu":
                if c.dpp: n=max(n,5)
                if c.op.startswith(("v_permlane","v_readlane","v_readfirstlane","v_writelane")): n=max(n,4)
    elif p.kind=="mfma":
        P={2:0,4:1,8:2}[p.passes]
        if c.kind=="mfma":
            if p.dst & c.srcC:
                if p.dst==c.srcC and p.op==c.op: n=max(n,[2,0,0][P])
                else: n=max(n,[4,6,10][P])
            if p.dst & c.srcAB: n=max(n,[5,8,12][P])
            if (p.dst & c.dst) and not (p.dst & c.srcC): n=max(n,[5,8,12][P])
        elif c.kind in ("valu","ds","vmem"):
            if p.dst & (c.src|c.dst): n=max(n,[5,8,12][P])
            if c.kind=="valu" and p.srcC & c.dst: n=max(n,[1,3,7][P])
    elif p.kind=="vmem":
        if p.wide and (p.wide & c.dst): n=max(n,2)
    elif p.kind=="salu":
        if ("x","m0") in p.dst and ("x","m0") in c.src and c.kind in ("vmem","ds"): n=max(n,1)
    return n

class Asm:
    def __init__(self):
        self.lines=[]; self.uid=0
    def __call__(self, text):
        for l in text.split("\n"):
            l=l.strip()
            if l: self.lines.append(l)
    def label(self, name): self.lines.append(name+":")
    def newlabel(self, base):
        self.uid+=1; return f"{base}_{self.uid}"
    def autolgkm(self):
        out=[]; on=False; pend=[]
        for l in self.lines:
            if l.startswith(";AUTOLGKM_ON"): on=True; pend=[]; continue
            if l.startswith(";AUTOLGKM_OFF"):
                assert not any(pend), "pending LDS reads at end of region"
                on=False; continue
            if on:
                c=Ins(l)
                if c.op=="s_waitcnt":
                    m=re.search(r"lgkmcnt\((\d+)\)", l)
                    if m:
                        n=int(m.group(1)); pend=pend[len(pend)-n:] if n>0 else []
                else:
                    assert not (c.op.startswith("s_load") or c.op.startswith("s_mem")) or not any(pend) or "nolgkm" in l, l
                    touch=c.src|c.dst
                    last=-1
                    for i,p in enumerate(pend):
                        if p & touch: last=i
                    if last>=0:
                        n=len(pend)-1-last
                        n=min(n,15)
                        out.append(f"s_waitcnt lgkmcnt({n})")
                        pend=pend[len(pend)-n:] if n>0 else []
                    if c.kind=="ds": pend.append(set(c.dst))
            out.append(l)
        self.lines=out
    def caplgkm(self):
        out=[]; n=0
        for l in self.lines:
            if l.startswith("ds_"):
                if n>=15: out.append("s_waitcnt lgkmcnt(14)"); n=14
                n+=1
            elif l.startswith("s_waitcnt"):
                m=re.search(r"lgkmcnt\((\d+)\)", l)
                if m: n=min(n,int(m.group(1)))
            out.append(l)
        self.lines=out
    def finish(self, verbose=False):
        self.autolgkm()
        self.caplgkm()
        ins=[Ins(l) for l in self.lines]
        added=0
        MAXW=13
        while True:
            labels={x.label:i for i,x in enumerate(ins) if x.kind=="label"}
            jumps={}
            for i,x in enumerate(ins):
                if x.kind=="branch":
                    jumps.setdefault(labels[x.target],[]).append(i)
            out=[]; changed=False
            extra={}
            for i,c in enumerate(ins):
                if c.kind not in ("valu","mfma","ds","vmem","salu"): continue
                def walk(dm0):
                    worst=0
                    stack=[(i,0,dm0)]; seen=set()
                    while stack:
                        j,d,dm=stack.pop()
                        preds=[]
                        if j>0 and not ins[j-1].uncond: preds.append(j-1)
                        if ins[j].kind=="label": preds+=jumps.get(j,[])
                        for q in preds:
                            p=ins[q]
                            dd=d
                            if p.kind=="mfma" and dm is not None: dd=max(d,dm+p.passes)
                            r=need(p,c)-dd
                            if r>worst: worst=r
                            nd=dd+p.ws+extra.get(q,0)
                            ndm=dd if p.kind=="mfma" else dm
                            if nd<MAXW and (q,nd,ndm) not in seen:
                                seen.add((q,nd,ndm)); stack.append((q,nd,ndm))
                    return worst
                worst=walk(None)
                if worst>0 and c.kind=="mfma" and walk(-1)<=0: worst=0
                if worst>0:
                    extra[i]=worst; changed=True
            if not changed: break
            for i,c in enumerate(ins):
                if i in extra:
                    out.append(Ins(f"s_nop {extra[i]-1} ; auto")); added+=extra[i]
                out.append(c)
            ins=out
        if verbose: print("auto wait states:",added, "instrs:", sum(1 for x in ins if x.ws>0))
        return "\n".join((x.text if x.kind in("label",) else "    "+x.text) for x in ins)+"\n"

def vr(b,n=1): return f"v{b}" if n==1 else f"v[{b}:{b+n-1}]"
def ar(b,n=1): return f"a{b}" if n==1 else f"a[{b}:{b+n-1}]"
def sr(b,n=1): return f"s{b}" if n==1 else f"s[{b}:{b+n-1}]"

def interleave(main, fill, per=2, start=0):
    out=[]; k=0
    for i,m in enumerate(main):
        out.append(m)
        if i>=start:
            for _ in range(per):
                if k<len(fill): out.append(fill[k]); k+=1
    out+=fill[k:]
    return out

class SAlloc:
    def __init__(self, start, end=101):
        self.n=start; self.end=end; self.names={}
    def __call__(self, name, n=1, align=None):
        al = align or (1 if n==1 else (2 if n==2 else 4))
        self.n=(self.n+al-1)//al*al
        b=self.n; self.n+=n
        assert self.n<=self.end+1, "out of sgprs"
        self.names[name]=b
        return sr(b,n)

def weave(main, fill, nv=2, start=0):
    out=[]; k=0
    for i,m in enumerate(main):
        out.append(m)
        if i<start: continue
        used=0; cnt=0
        while k<len(fill) and cnt<3:
            f=fill[k]
            c=0
            if f.startswith("v_"): c=2 if f.startswith(("v_permlane","v_exp","v_rcp")) else 1
            if used+c>nv and not (used==0): break
            out.append(f); k+=1; used+=c; cnt+=1
    out+=fill[k:]
    return out
```

```python
from common import *
QK_S=576; QK_K=4*QK_S; L_QK=0
L_VI=4608
L_KV=8192
L_R=24576; RW=1152
vL16,vL4,vIDX,vQKW,vQKR,vVW,vOST,vCST,vCLD,vDST,vKV,vRW = range(12)
vSEL=12; vSENT=16
vT=20
vRR=26; vAST=27
vM=28
vQK=48
vAV=64
vKX=72; vVX=88
vOP=72; vG=80
vS=104
vR=116
vVM=128
vP=136
vFLG=143
vO=144
vPUB=160; vE=164
vWO=168
aQ=0; aONE=240
def woreg(i,u,n=8,o=0):
    f=2*i+u
    return ar(248+o,n) if f==11 else vr(vWO+8*f+o,n)

def gen_chain(a, cfg):
    al=SAlloc(S_FIRST,83); S={}
    for n in ("srdq","srdk","srdv","srdo"): S[n]=al(n,4)
    for n in ("m0t","cexp","mlo"): S[n]=al(n,2)
    for n in ["x","c","step","t0","t1","t2","t3","kh","nh","cu","p0","p1","p2","p3","p4","sent","u",
              "bB","bBr","bC","bDr","bDw","bAw","bA1","bA2","bKV","bKM","lKV","fl","oD","oD4","oA","oC","oK","rC","mK","oV","fa","oDw","oG","oG4","nA","nB","nC","nD"]: S[n]=al(n)
    cfg["chainS"]=S
    stamps = cfg.get("stamps",False); ST0=lo(S["srdq"])
    ws=sWS; sw=sW
    sx,sc,sstep=S["x"],S["c"],S["step"]
    t0,t1,t2,t3=S["t0"],S["t1"],S["t2"],S["t3"]
    skh,snh,scu,su=S["kh"],S["nh"],S["cu"],S["u"]
    E=lambda l: emit(a,l)
    NCP=4
    a.label("Lc_start")
    lane="v40"
    a(f"v_mov_b32 {lane}, v0")
    a(f"s_lshr_b32 {sx}, {sROLE}, 5")
    a(f"s_and_b32 {sc}, {sROLE}, 31")
    a(f"s_mul_i32 {t0}, {sx}, 24")
    a(f"s_add_u32 {scu}, {t0}, {sc}")
    a(f"s_lshr_b32 {skh}, {sw}, 1")
    a(f"s_and_b32 {snh}, {sw}, 1")
    wsrd=[S["srdq"],S["srdk"],S["srdv"],S["srdo"]]
    for i,r in enumerate(wsrd): srd(a,r,16+8*i,7864320)
    pQ,pO,pT=50,51,52
    a(f"v_lshrrev_b32 v30, 3, {lane}")
    a(f"v_and_b32 v31, 7, {lane}")
    a(f"v_xor_b32 v31, v31, v30")
    a(f"v_mul_u32_u24 v32, 12288, v30")
    a(f"v_lshl_add_u32 v{pQ}, v31, 4, v32")
    a(f"v_lshrrev_b32 v30, 2, {lane}")
    a(f"v_and_b32 v31, 3, {lane}")
    a(f"v_mul_u32_u24 v32, 1280, v30")
    a(f"v_lshl_add_u32 v{pO}, v31, 4, v32")
    sq=S["p0"]; so=S["p1"]; sl=S["p2"]
    a(f"s_mul_i32 {t0}, {skh}, 320")
    a(f"s_lshl_b32 {t1}, {snh}, 5")
    a(f"s_add_u32 {t0}, {t0}, {t1}")
    a(f"s_mul_i32 {t0}, {t0}, 12288")
    a(f"s_lshl_b32 {t2}, {scu}, 7")
    a(f"s_add_u32 {sq}, {t0}, {t2}")
    a(f"s_cmp_ge_u32 {sc}, 20")
    a(f"s_cselect_b32 {t2}, 20, 0")
    a(f"s_sub_u32 {t2}, {sc}, {t2}")
    a(f"s_lshl_b32 {su}, {t2}, 2")
    a(f"s_add_u32 {su}, {su}, {sw}")
    a(f"s_lshl_b32 {t0}, {sx}, 2")
    a(f"s_add_u32 {t0}, {t0}, {sw}")
    a(f"s_mul_i32 {t0}, {t0}, {384*1280}")
    a(f"s_lshl_b32 {t2}, {t2}, 6")
    a(f"s_add_u32 {so}, {t0}, {t2}")
    a(f"s_mul_i32 {t0}, {skh}, {9*8192}")
    a(f"s_lshl_b32 {t1}, {snh}, 12")
    a(f"s_add_u32 {sl}, {t0}, {t1}")
    a(f"v_and_b32 v30, 15, {lane}")
    a(f"v_bfe_u32 v31, {lane}, 4, 1")
    a(f"v_bfe_u32 v32, {lane}, 5, 1")
    a(f"v_bfe_u32 v33, {lane}, 3, 1")
    a(f"v_and_b32 v34, 7, {lane}")
    a(f"v_lshrrev_b32 v35, 4, {lane}")
    a("s_waitcnt lgkmcnt(0)")
    wflav=cfg.get("wflav","nt")
    blocks=[(m,i) for m in range(3) for i in range(5)]+[(3,i) for i in range(6)]; NB=21
    NS=9
    def dma(bi):
        m,i=blocks[bi]; slot=bi%NS
        for q in range(4):
            a(f"s_add_u32 m0, {sl}, {slot*8192+q*1024}")
            if m<3:
                a(f"s_add_u32 {t0}, {sq}, {(64*i+8*q)*12288}")
                a(f"buffer_load_dwordx4 v{pQ}, {wsrd[m]}, {t0} offen {wflav} lds")
            else:
                a(f"s_add_u32 {t0}, {so}, {(64*i+16*q)*1280}")
                a(f"buffer_load_dwordx4 v{pO}, {wsrd[m]}, {t0} offen {cfg.get('woflav','nt')} lds")
    for bi in range(NS-1): dma(bi)
    a(f"v_bfe_u32 v37, {lane}, 2, 1")
    a(f"v_and_b32 v38, 3, {lane}")
    a(f"s_mul_i32 {t0}, {skh}, {9*8192}")
    for jl in range(2):
        for tt in range(2):
            a(f"v_lshl_add_u32 v44, v31, 2, v37")
            a(f"v_add_u32 v44, {2*jl}, v44")
            a(f"v_lshrrev_b32 v45, 1, v38")
            a(f"s_lshl_b32 {t1}, {snh}, 2")
            a(f"s_add_u32 {t1}, {t1}, {2*tt}")
            a(f"v_add_u32 v45, {t1}, v45")
            a(f"v_xor_b32 v45, v45, v44")
            a(f"v_lshl_add_u32 v44, v32, 4, v44")
            a(f"v_lshl_add_u32 v44, v33, 3, v44")
            a(f"v_lshl_add_u32 v44, v44, 7, {t0}")
            a(f"v_lshl_add_u32 v44, v45, 4, v44")
            a(f"v_and_b32 v45, 1, v38")
            a(f"v_lshl_add_u32 v{pT+jl*2+tt}, v45, 3, v44")
    a(f"v_lshl_add_u32 v44, v33, 5, v37")
    a(f"v_lshl_add_u32 v44, v31, 4, v44")
    a(f"v_lshl_add_u32 v44, v32, 2, v44")
    a(f"v_lshl_add_u32 v44, v44, 6, {sl}")
    a(f"v_lshl_add_u32 v{pT+4}, v38, 3, v44")
    for r in range(5): a(f"v_add_u32 v{pT+5+r}, 57344, v{pT+r}")
    a(f"v_lshlrev_b32 v{vL16}, 4, {lane}")
    a(f"v_lshlrev_b32 v{vL4}, 2, {lane}")
    a(f"v_mul_u32_u24 v36, 0xAAAA, v33")
    a(f"v_add_u32 v{vIDX}, 0x4444, v36")
    a(f"s_mul_i32 {t0}, {skh}, {2*QK_S}")
    a(f"s_lshl_b32 {t1}, {snh}, 8")
    a(f"s_add_u32 {t0}, {t0}, {t1}")
    a(f"v_mul_u32_u24 v36, {QK_K}, v32")
    a(f"v_mul_u32_u24 v37, {QK_S}, v31")
    a(f"v_add3_u32 v36, v36, v37, {t0}")
    a(f"v_lshl_add_u32 v{vQKW}, v30, 3, v36")
    a(f"v_mul_u32_u24 v36, {QK_S}, v38")
    a(f"v_lshrrev_b32 v37, 2, {lane}")
    a(f"v_lshl_add_u32 v{vQKR}, v37, 3, v36")
    a(f"s_lshl_b32 {t0}, {snh}, 10")
    a(f"s_lshl_b32 {t1}, {skh}, 9")
    a(f"s_add_u32 {t0}, {t0}, {t1}")
    a(f"s_add_u32 {t0}, {t0}, {L_VI}")
    a(f"v_lshl_add_u32 v36, v31, 8, {t0}")
    a(f"v_lshl_add_u32 v36, v30, 4, v36")
    a(f"v_lshl_add_u32 v{vVW}, v32, 3, v36")
    a(f"v_lshl_add_u32 v{vOST}, v33, 30, v{vL16}")
    a(f"s_mul_i32 {t0}, {sw}, {RW}")
    a(f"s_add_u32 {t0}, {t0}, {L_R}")
    a(f"v_lshl_add_u32 v36, v32, 9, {t0}")
    a(f"v_lshl_add_u32 v36, v30, 4, v36")
    a(f"v_lshl_add_u32 v{vRW}, v31, 3, v36")
    a(f"s_lshl_b32 {t0}, {sw}, 7")
    a(f"s_add_u32 {t0}, {t0}, {L_R}")
    a(f"v_mul_u32_u24 v36, {RW}, v35")
    a(f"v_lshl_add_u32 v36, v34, 4, v36")
    a(f"v_add_u32 v{vRR}, {t0}, v36")
    b=lo(S['mlo']); a(f"s_mov_b32 s{b}, 0x00ff00ff"); a(f"s_mov_b32 s{b+1}, 0x00ff00ff")
    a(f"s_lshl_b32 {t0}, {sx}, 7")
    a(f"v_lshlrev_b32 v36, 4, v34")
    a(f"v_lshl_add_u32 v36, v31, 3, v36")
    a(f"v_lshl_add_u32 v37, v32, 1, v33")
    a(f"v_mul_u32_u24 v37, {CCOPY}, v37")
    a(f"v_add3_u32 v{vCST}, v37, v36, {t0}")
    a(f"v_or_b32 v37, v32, v33")
    a(f"v_lshl_add_u32 v{vDST}, v37, 30, v36")
    a(f"v_lshlrev_b32 v36, 7, v35")
    a(f"v_lshl_add_u32 v36, v34, 4, v36")
    a(f"v_cmp_eq_u32 vcc, {sx}, v35")
    a(f"v_cndmask_b32 v37, 0, 1, vcc")
    a(f"v_or_b32 v37, v37, v33")
    a(f"v_lshl_add_u32 v{vCLD}, v37, 30, v36")
    a(f"v_xor_b32 v37, {snh}, v33")
    a(f"v_lshl_add_u32 v{vAST}, v37, 30, v{vL16}")
    a(f"v_and_b32 v36, 1, {lane}")
    a(f"v_lshlrev_b32 v36, 4, v36")
    a(f"v_mov_b32 v37, 0x3f80")
    a(f"v_lshlrev_b32 v37, v36, v37")
    a(f"v_lshrrev_b32 v36, 1, v34")
    for i in range(4):
        a(f"v_cmp_eq_u32 vcc, {i}, v36")
        a(f"v_cndmask_b32 v{vSEL+i}, 0, v37, vcc")
    a(f"v_mov_b32 v36, 0x3f803f80")
    a(f"v_mov_b32 v37, 0x3f003f00")
    for i in range(6): a(f"v_accvgpr_write_b32 a{aONE+i}, v{36 if i<4 else 37}")
    a(f"s_mov_b32 {S['sent']}, {SENT:#x}")
    for i in range(4): a(f"v_mov_b32 v{vSENT+i}, {S['sent']}")
    cb=lo(S['cexp']); ce=f32((192**-0.5)*math.log2(math.e))
    a(f"s_mov_b32 s{cb}, {ce:#x}"); a(f"s_mov_b32 s{cb+1}, {ce:#x}")
    bB,bBr,bC,bDr,bDw,bAw,bA1,bA2,bKV,bKM = (S[n] for n in ("bB","bBr","bC","bDr","bDw","bAw","bA1","bA2","bKV","bKM"))
    a(f"s_mul_i32 {t0}, {sx}, {LSTR}")
    a(f"s_add_u32 {t0}, {t0}, {sXB}")
    a(f"s_add_u32 {t0}, {t0}, {X_L}")
    a(f"s_mul_i32 {t1}, {sx}, {24*4096}")
    a(f"s_sub_u32 {S['p4']}, {t0}, {t1}")
    a(f"s_lshl_b32 {t1}, {sc}, 10")
    a(f"s_add_u32 {bB}, {t0}, {t1}")
    a(f"s_mul_i32 {t1}, {sw}, 6144")
    a(f"s_add_u32 {bBr}, {t0}, {t1}")
    a(f"s_lshr_b32 {t0}, {su}, 4")
    a(f"s_lshl_b32 {t0}, {t0}, 14")
    a(f"s_and_b32 {t1}, {su}, 15")
    a(f"s_lshl_b32 {t1}, {t1}, 9")
    a(f"s_add_u32 {t0}, {t0}, {t1}")
    a(f"s_add_u32 {bC}, {t0}, {sXB}")
    a(f"s_lshl_b32 {t0}, {sx}, 16")
    a(f"s_add_u32 {t0}, {t0}, {sXB}")
    a(f"s_add_u32 {t0}, {t0}, {X_D}")
    a(f"s_mul_i32 {t1}, {skh}, 5120")
    a(f"s_add_u32 {bDr}, {t0}, {t1}")
    a(f"s_lshl_b32 {t1}, {su}, 7")
    a(f"s_add_u32 {bDw}, {t0}, {t1}")
    a(f"s_cmp_ge_u32 {sc}, 20")
    a(f"s_cselect_b32 {t0}, {OOB}, 0")
    a(f"v_or_b32 v{vCST}, {t0}, v{vCST}")
    a(f"v_or_b32 v{vDST}, {t0}, v{vDST}")
    a(f"s_add_u32 {t3}, {S['p4']}, {L_AB}")
    a(f"s_lshl_b32 {t0}, {scu}, 12")
    a(f"s_add_u32 {bAw}, {t0}, {t3}")
    a(f"s_mul_i32 {t0}, {scu}, 21846")
    a(f"s_lshr_b32 {t0}, {t0}, 16")
    a(f"s_lshl_b32 {t1}, {t0}, 7")
    a(f"s_add_u32 {t1}, {t1}, {sXB}")
    a(f"s_add_u32 {S['fl']}, {t1}, {F_L}")
    a(f"s_mul_i32 {t0}, {t0}, 3")
    a(f"s_sub_u32 {t1}, {scu}, {t0}")
    a(f"s_mul_i32 {t2}, {skh}, 3")
    a(f"s_add_u32 {t2}, {t2}, {t1}")
    a(f"s_lshl_b32 {t2}, {t2}, 2")
    a(f"s_sub_u32 {S['oV']}, {S['fl']}, {sXB}")
    a(f"s_sub_u32 {S['oV']}, {S['oV']}, {F_L}")
    a(f"s_lshr_b32 {S['oV']}, {S['oV']}, 1")
    a(f"s_add_u32 {S['oV']}, {S['oV']}, {t2}")
    a(f"s_add_u32 {S['oV']}, {S['oV']}, {sXB}")
    a(f"s_add_u32 {S['oV']}, {S['oV']}, {F_G1+12}")
    a(f"s_cmp_eq_u32 {t1}, 0")
    a(f"s_cselect_b32 {t2}, 1, 0")
    a(f"s_add_u32 {t2}, {t2}, {t0}")
    a(f"s_lshl_b32 {t2}, {t2}, 12")
    a(f"s_add_u32 {bA1}, {t2}, {t3}")
    a(f"s_cmp_eq_u32 {t1}, 2")
    a(f"s_cselect_b32 {t2}, 1, 2")
    a(f"s_add_u32 {t2}, {t2}, {t0}")
    a(f"s_lshl_b32 {t2}, {t2}, 12")
    a(f"s_add_u32 {bA2}, {t2}, {t3}")
    a(f"s_lshl_b32 {t0}, {scu}, 12")
    a(f"s_mul_i32 {t1}, {skh}, {WS_V-WS_K}")
    a(f"s_add_u32 {t0}, {t0}, {t1}")
    a(f"s_lshl_b32 {t1}, {snh}, 11")
    a(f"s_add_u32 {t0}, {t0}, {t1}")
    a(f"s_add_u32 {bKV}, {t0}, {WS_K}")
    a(f"s_lshl_b32 {t0}, {scu}, 12")
    a(f"s_lshl_b32 {t1}, {sw}, 10")
    a(f"s_add_u32 {t0}, {t0}, {t1}")
    a(f"s_add_u32 {t0}, {t0}, {S['p4']}")
    a(f"s_add_u32 {bKM}, {t0}, {L_KVM}")
    a(f"s_lshl_b32 {t0}, {sw}, 11")
    a(f"s_add_u32 {S['lKV']}, {t0}, {L_KV}")
    for n in ("nA","nB","nC","nD"): a(f"s_mov_b32 {S[n]}, 0")
    SE4,SE2=vr(vSENT,4),vr(vSENT,2)
    def consume(bi):
        m,i=blocks[bi]; slot=bi%NS
        hi = slot*8192 >= 57344
        R=lambda r: pT+r+(5 if hi else 0)
        ob=slot*8192-(57344 if hi else 0)
        if m<3:
            for tt in range(2):
                for jj in range(4):
                    a(f"ds_read_b64_tr_b16 {ar(aQ+((m*2+tt)*5+i)*8+2*jj,2)}, v{R((jj&1)*2+tt)} offset:{ob+32*(jj>>1)*128}")
        else:
            for u in range(2):
                for jj in range(4):
                    a(f"ds_read_b64_tr_b16 {woreg(i,u,2,2*jj)}, v{R(4)} offset:{ob+(8*(jj>>1)+2*(jj&1))*64+32*u}")
    for bi in range(NB):
        a(f"s_waitcnt vmcnt({4*min(NS-2,NB-1-bi)}) lgkmcnt(0)")
        a("s_barrier")
        if bi+NS-1<NB: dma(bi+NS-1)
        consume(bi)
    a("s_waitcnt lgkmcnt(0)")
    if cfg.get("rec"): cfg["rec"](a,1)
    confirm_mode(a,"Lc_cm",44,lane)
    if "near" in cfg: a(f"s_add_u32 {bC}, {bC}, {cfg['near']}")
    else:
        a(f"s_cmp_gt_u32 s84, {(512<<16)+128}")
        a(f"s_cselect_b32 {t0}, 8192, 0")
        a(f"s_add_u32 {bC}, {bC}, {t0}")
    a("s_barrier")
    h0,h1,h2,h3=S["p0"],S["p1"],S["p2"],S["p3"]
    ldF=f"buffer_load_dword v{vFLG}, off, {ws}, {S['fl']} sc1"
    def kv_dma(seg,tt):
        return [f"s_and_b32 {t1}, {seg}, 1", f"s_lshl_b32 {t1}, {t1}, 13", f"s_add_u32 m0, {t1}, {S['lKV']}",
                f"s_mul_i32 {tt}, {seg}, {SEG_STRIDE}", f"s_add_u32 {tt}, {tt}, {bKV}"]+\
               [f"buffer_load_dwordx4 v{vL16}, {ws}, {tt} offen offset:{q*1024} sc1 lds" for q in range(2)]
    a(f"s_mov_b32 {sstep}, 0")
    if not cfg.get("noflag"):
        a.label("Lc_f0")
        a(ldF.replace(S['fl'],S['oV'])); E(tmo())
        a("s_waitcnt vmcnt(0)")
        a(f"v_cmp_eq_u32 vcc, 0, v{vFLG}")
        a("s_cbranch_vccnz Lc_f0")
    E(kv_dma(sstep,t0))
    oD,oD4,oA,oC,oK,rC = (S[n] for n in ("oD","oD4","oA","oC","oK","rC"))
    a(f"s_mov_b32 {oD}, {bDr}")
    a(f"s_add_u32 {oD4}, {oD}, 4096")
    a(f"s_mov_b32 {rC}, 0")
    a("s_waitcnt vmcnt(0)")
    a("s_barrier")
    if cfg.get("rec"): cfg["rec"](a,2)
    modes=cfg.get("modes",(0,1))
    for mode in modes:
        for w in range(4):
            if (mode,w)!=(modes[-1],3):
                a(f"s_lshl_b32 {t0}, {sMODE}, 2")
                a(f"s_add_u32 {t0}, {t0}, {sw}")
                a(f"s_cmp_eq_u32 {t0}, {mode*4+w}")
                a(f"s_cbranch_scc1 Lc{mode}{w}_loop")
            else: a(f"s_branch Lc{mode}{w}_loop")

    def loop(mode,w):
        loc="sc1" if mode else ""
        kh,nh=w>>1,w&1
        L=lambda n: f"Lc{mode}{w}_{n}"
        names=[]
        def stamp(name,rt=False):
            if not stamps: return []
            i=len(names); names.append(name); cfg["stamp_names"]=names
            r=ST0+2*i if i<8 else 84+2*(i-8)
            return [f"{'s_memrealtime' if rt else 's_memtime'} {sr(r,2)} ; nolgkm {name}"]
        slow=[]
        cnt=lambda n: [f"s_add_u32 {S[n]}, {S[n]}, 1"] if cfg.get("count") else []
        def exact(regs, again):
            o=["s_waitcnt vmcnt(0)"]
            for k,r in enumerate(regs):
                o.append(f"v_cmp_eq_u32 {S['m0t'] if k==0 else 'vcc'}, {S['sent']}, v{r}")
                if k: o.append(f"s_or_b64 {S['m0t']}, {S['m0t']}, vcc")
            return o+[f"s_cbranch_scc1 {again}"]
        def often(lab): return [f"s_and_b32 {S['p4']}, {sTMO}, 15", f"s_cbranch_scc1 {lab}"]
        d_ld=[f"buffer_load_dwordx4 {vr(vM+4*i,4)}, v{vL16}, {ws}, {oD4 if i==4 else oD} offen offset:{(i%4)*1024} sc1" for i in range(5)]
        def smf(acc,i,m,tt): return f"v_smfmac_f32_16x16x64_bf16 {vr(acc,4)}, {vr(vM+4*i,4)}, {ar(aQ+((m*2+tt)*5+i)*8,8)}, v{vIDX}"
        def qk(i,tiles=(0,1)): return [smf(vQK+(tt*2+m)*4,i,m,tt) for tt in tiles for m in range(2)]
        vs=[smf(vAV+4*tt,i,2,tt) for i in range(5) for tt in range(2)]
        def chk(i):
            d0,d2=vM+4*i,vM+4*i+2; lab=L(f"D{i}")
            slow.extend([lab+"_r:", f"s_waitcnt vmcnt({4-i})", f"v_cmp_u_f32 vcc, v{d0}, v{d2}", f"s_cbranch_vccz {lab}_c",
                         lab+"_s:"]+d_ld[i:]+cnt("nD")+tmo()+often(lab+"_r")+exact([d0,d2],lab+"_s")+[f"s_branch {lab}_c"])
            return [f"s_waitcnt vmcnt({4-i})", f"v_cmp_u_f32 vcc, v{d0}, v{d2}"], [f"s_cbranch_vccnz {lab}_s", lab+"_c:"]
        def merge(A,B):
            return [f"v_permlane32_swap_b32 v{A+r}, v{B+r}" for r in range(4)]+[f"v_pk_add_f32 {vr(A+r,2)}, {vr(A+r,2)}, {vr(B+r,2)}" for r in (0,2)]+\
                   [f"v_cvt_pk_bf16_f32 v{A}, v{A}, v{A+1}", f"v_cvt_pk_bf16_f32 v{A+1}, v{A+2}, v{A+3}"]
        def taker(fill):
            def take(n):
                o=fill[:n]; del fill[:n]
                return o+delay(n-len(o))
            return take

        a.label(L("loop"))
        a(";AUTOLGKM_ON")
        E(stamp("top")); E(stamp("rt",True))
        fill=[f"s_and_b32 {t0}, {sstep}, 1", f"s_lshl_b32 {oA}, {t0}, 11",
              f"s_lshl_b32 {t0}, {t0}, 13", f"s_add_u32 {t0}, {t0}, {L_KV}", f"v_add_u32 v{vKV}, {t0}, v{vL16}"]
        fill+=[f"ds_read_b128 {vr(vKX+4*f,4)}, v{vKV} offset:{f*1024}" for f in range(8) if w==3 or (w<2 and f<4 and f%2==w)]
        fill+=[f"s_add_u32 {h1}, {oA}, {bAw}",
               f"s_add_u32 {oC}, {rC}, {bC}", f"s_add_u32 {rC}, {rC}, {CRING}", f"s_cmp_eq_u32 {rC}, {3*CRING}", f"s_cselect_b32 {rC}, 0, {rC}",
               f"s_add_u32 {h2}, {rC}, {bC}", f"s_add_u32 {h0}, {h2}, {4*CCOPY}",
               f"s_and_b32 {t0}, {sstep}, 3", f"s_mul_i32 {oK}, {t0}, {KVM_RING}", f"s_add_u32 {oK}, {oK}, {bKM}",
               f"s_lshl_b32 {S['fa']}, {t0}, 15",
               f"s_xor_b32 {t0}, {t0}, 2", f"s_lshl_b32 {t0}, {t0}, 14", f"s_add_u32 {h3}, {t0}, {bDw}"]
        fill+=[f"v_mov_b64 {vr(r,2)}, 0" for r in range(vQK,vAV+8,2)]
        take=taker(fill)
        E(take(cfg.get("dD",34)))
        for i in range(5):
            a(d_ld[i])
            if i<4: E(take(cfg.get("dD2",8)))
        E(fill)
        c0,c1=chk(0); E(c0+c1)
        E(stamp("D0"))
        vD=cfg.get("vD",0)
        for i in range(4):
            g=qk(i); c0,c1=chk(i+1)
            if i<vD: g=g[:1]+[vs.pop(0)]+g[1:]; E(g[:2]+c0+g[2:4]+c1+g[4:])
            else: E(g[:1]+c0+g[1:3]+c1+g[3:])
        E(stamp("D4"))
        hk=[f"buffer_store_dwordx2 {SE2}, v{vCST}, {ws}, {h2} offen sc1"]
        if NCP>4: hk.append(f"buffer_store_dwordx2 {SE2}, v{vCST}, {ws}, {h0} offen sc1")
        hk.append(f"buffer_store_dwordx2 {SE2}, v{vDST}, {ws}, {h3} offen {loc}")
        def qkm(tt): return merge(vQK+8*tt,vQK+8*tt+4)+[f"ds_write_b64 v{vQKW}, {vr(vQK+8*tt,2)} offset:{tt*128}"]
        g=qk(4)
        E(g[:1]+hk[:1]+g[1:])
        E(qkm(0)); E(hk[1:-1]); E(qkm(1))
        E(vs[:1]+hk[-1:]+vs[1:2]+([] if cfg.get("noflag") else [ldF])+vs[2:3])
        a("s_waitcnt lgkmcnt(0)")
        a("s_barrier")
        E(stamp("bar1"))
        tr=lambda ks,m:[f"ds_read_b64_tr_b16 {vr(vQK+8*ks+4*m+2*hh,2)}, v{vQKR} offset:{L_QK+m*QK_K+(2*ks+hh)*128}" for hh in range(2)]
        if w<2: E(tr(0,0)+tr(1,0)+[x.replace(vr(vQK+8*nh+4+2*hh,2),vr(vPUB+2*hh,2)) for hh,x in enumerate(tr(nh,1))])
        else: E(tr(0,0)+tr(0,1)+tr(1,0)+tr(1,1))
        E(vs[3:4])
        if w==3:
            a(f"s_add_u32 {t2}, {bA1}, {oA}")
            a(f"s_add_u32 {t3}, {bA2}, {oA}")
        D=[vS,vS+4,vS+8]; Dm=vS+8
        def sc_(k): return [f"v_mfma_f32_16x16x32_bf16 {vr(D[k],4)}, {vr(vKX+(ks*2+k)*4 if k<2 else vQK+4+8*ks,4)}, {vr(vQK+8*ks,4)}, {vr(D[k],4) if ks else 0}" for ks in range(2)]
        dp=lambda d,s,bm: f"v_add_f32_dpp v{d}, v{s}, v{s} row_ror:8 row_mask:0xf bank_mask:{bm}"
        U0,U1=vT+4,vT+5
        def fin(k):
            if k<2: return [dp(vT+r,D[k]+r,"0xc" if k else "0x3") for r in range(4)]
            return [dp(U0,Dm,"0x3"),dp(U1,Dm+1,"0x3"),dp(U0,Dm+2,"0xc"),dp(U1,Dm+3,"0xc"),f"v_permlane32_swap_b32 v{U0}, v{U1}",f"v_add_f32 v{U0}, v{U0}, v{U1}"]
        sal=[f"s_add_u32 {h0}, {sstep}, 1"]
        dm=kv_dma(h0,S["oV"]); sal+=[x.replace("m0",S["mK"]) for x in dm[:5]]; dm=dm[5:]; dm[0]=f"s_mov_b32 m0, {S['mK']}\n"+dm[0]
        sal+=[f"s_bfe_u32 {h2}, {sstep}, 0x10002", f"s_add_u32 {h3}, {sstep}, 2"]
        vrest=vs[4:]
        vtail=merge(vAV,vAV+4)+[f"ds_write_b64 v{vVW}, {vr(vAV,2)}"]
        pub=[f"v_and_or_b32 v{vPUB}, v{vPUB}, -2, {h2}", f"buffer_store_dwordx4 {vr(vPUB,4)}, v{vL16}, {ws}, {oK} offen {loc}"]
        SP=vS; mx,tp,sm=vE,vE+1,vE+2
        cx=S['cexp']; cx0=f"s{cb}"
        X,M=vP,vP+4; SUM=vS+8
        nx=[f"s_add_u32 {t0}, {sstep}, 1", f"s_and_b32 {t0}, {t0}, 3", f"s_lshl_b32 {t0}, {t0}, 14",
            f"s_add_u32 {oD}, {t0}, {bDr}", f"s_add_u32 {oD4}, {oD}, 4096", f"s_add_u32 {S['oDw']}, {t0}, {bDw}",
            f"s_add_u32 {S['oG']}, {S['fa']}, {bBr}", f"s_add_u32 {S['oG4']}, {S['oG']}, 4096"]
        zW=[f"v_mov_b64 {vr(vAV+2*k,2)}, 0" for k in range(4)]
        def bar2():
            a(f"s_cmp_eq_u32 {sstep}, 63")
            a("s_waitcnt lgkmcnt(0)")
            a("s_barrier")
            if w==3:
                for f in range(2): a(f"ds_read_b128 {vr(vVM+4*f,4)}, v{vL16} offset:{L_VI+f*1024}")
            if kh==1: a(f"ds_read_b128 {vr(vPUB,4)}, v{vL16} offset:{L_VI+nh*1024}")
            a(f"s_cbranch_scc1 {L('fin')}")
            E(zW)
        if w<3:
            E(sc_(w)+vrest[:2]); E(fin(w))
            if w<2: a(f"buffer_store_dwordx4 {vr(vT,4)}, v{vAST}, {ws}, {h1} offen {loc}")
            else: a(f"buffer_store_dword v{U0}, v{vL4}, {ws}, {h1} offen offset:1024 {loc}")
            E(stamp("A_st"))
            E(weave(vrest[2:],sal,nv=1)); E(vtail)
            bar2(); E(nx); E(pub[:1])
            E(stamp("v_done")); E(stamp("A_ok")); E(stamp("pv"))
        else:
            RS=[vR,vO]
            def ldA(k):
                R1,R2=RS[k],RS[k]+6
                return [f"buffer_load_dwordx4 {vr(R1,4)}, v{vL16}, {ws}, {t2} offen sc1", f"buffer_load_dwordx4 {vr(R2,4)}, v{vL16}, {ws}, {t3} offen sc1",
                        f"buffer_load_dword v{R1+4}, v{vL4}, {ws}, {t2} offen offset:1024 sc1", f"buffer_load_dword v{R2+4}, v{vL4}, {ws}, {t3} offen offset:1024 sc1"]
            f0,f1,f2=fin(0),fin(1),fin(2)
            E(sc_(2)+sc_(0)); E(stamp("A_st"))
            work=weave(sc_(1)+vrest,f2[:2]+sal[:2]+f2[2:4]+sal[2:],nv=2)+vtail+f0[:2]+f2[4:5]+f0[2:]+f2[5:]+f1
            pA=cfg.get("pS",26)
            E(work[:pA]); E(delay(pA-len(work))); E(ldA(0)); E(work[pA:])
            bar2(); E(nx); E(delay(cfg.get("dS2",0))); E(ldA(1))
            E(stamp("v_done"))
            def Acomp(k,ex):
                R1,R2=RS[k],RS[k]+6
                return [f"s_waitcnt vmcnt({3+ex})",
                  f"v_pk_add_f32 {vr(SP,2)}, {vr(vT,2)}, {vr(R1,2)}", f"v_pk_add_f32 {vr(SP+2,2)}, {vr(vT+2,2)}, {vr(R1+2,2)}",
                  f"s_waitcnt vmcnt({ex})",
                  f"v_pk_add_f32 {vr(SP,2)}, {vr(SP,2)}, {vr(R2,2)}", f"v_pk_add_f32 {vr(SP+2,2)}, {vr(SP+2,2)}, {vr(R2+2,2)}",
                  f"v_add_f32 v{SP+4}, v{U0}, v{R1+4}",
                  f"v_maximum3_f32 v{mx}, v{SP}, v{SP+1}, v{SP+2}",
                  f"v_add_f32 v{SP+4}, v{SP+4}, v{R2+4}",
                  f"v_maximum3_f32 v{mx}, v{mx}, v{SP+3}, v{SP+4}",
                  f"v_cmp_u_f32 vcc, v{mx}, v{mx}",
                  f"s_add_u32 {t1}, {S['fa']}, {bB}",
                  f"v_max_f32_dpp v{tp}, v{mx}, v{mx} row_ror:8 row_mask:0xf bank_mask:0xf",
                  f"v_max_f32_dpp v{mx}, v{mx}, v{mx} row_ror:8 row_mask:0xf bank_mask:0xf"]
            a.label(L("A_chk"))
            E(Acomp(0,4))
            a(f"s_cbranch_vccnz {L('A_s')}")
            a.label(L("A_c"))
            slow.extend([L("A_s")+":"]+ldA(0)+cnt("nA")+Acomp(1,4)+[f"s_cbranch_vccz {L('A_c')}"]+ldA(1)+cnt("nA")+
                        tmo()+often(L("A_chk"))+exact([vR,vR+4,vR+6,vR+10],L("A_s"))+Acomp(0,0)+[f"s_branch {L('A_c')}"])
            E(stamp("A_ok"))
            e2=vP+6
            shl=lambda d,s: f"v_mov_b32_dpp v{d}, v{s} row_shl:8 row_mask:0xf bank_mask:0xf bound_ctrl:0"
            E([f"v_permlane16_swap_b32 v{mx}, v{tp}", f"v_max_f32 v{sm}, v{mx}, v{tp}", f"v_max_f32 v{mx}, v{mx}, v{tp}", pub[0],
               f"v_permlane32_swap_b32 v{mx}, v{sm}", f"v_max_f32 v{mx}, v{mx}, v{sm}", f"v_mul_f32 v{mx}, {cx0}, v{mx}"])
            for r in (0,2): a(f"v_pk_fma_f32 {vr(SP+r,2)}, {vr(SP+r,2)}, {cx}, {vr(mx,2)} op_sel_hi:[1,1,0] neg_lo:[0,0,1] neg_hi:[0,0,1]")
            E([f"v_exp_f32 v{SP}, v{SP}", f"v_exp_f32 v{SP+1}, v{SP+1}", f"v_exp_f32 v{SP+2}, v{SP+2}",
               f"v_cvt_pk_bf16_f32 v{X}, v{SP}, v{SP+1}", f"v_exp_f32 v{SP+3}, v{SP+3}",
               f"v_fma_f32 v{SP+4}, v{SP+4}, {cx0}, -v{mx}",
               f"v_cvt_pk_bf16_f32 v{X+1}, v{SP+2}, v{SP+3}", shl(X+2,X), f"v_exp_f32 v{M}, v{SP+4}", shl(X+3,X+1), f"v_mov_b32 v{e2}, v{M}"])
            OO=vQK
            pvx=[f"v_mfma_f32_16x16x32_bf16 {vr(OO+4*t,4)}, {vr(vVX+4*t,4)}, {vr(X,4)}, 0" for t in range(4)]
            pvm=[f"v_mfma_f32_16x16x16_bf16 {vr(OO+4*t,4)}, {vr(vVM+2*t,2)}, {vr(M,2)}, {vr(OO+4*t,4)}" for t in range(4)]
            sux=f"v_mfma_f32_16x16x32_bf16 {vr(SUM,4)}, {ar(aONE,4)}, {vr(X,4)}, 0"
            sum_=f"v_mfma_f32_16x16x16_bf16 {vr(SUM,4)}, {ar(aONE+4,2)}, {vr(M,2)}, {vr(SUM,4)}"
            onm=lambda t:[f"v_mul_f32 v{OO+4*t+r}, v{OO+4*t+r}, v{sm}" for r in range(4)]+\
                         [f"v_cvt_pk_bf16_f32 v{vOP+2*t}, v{OO+4*t}, v{OO+4*t+1}", f"v_cvt_pk_bf16_f32 v{vOP+2*t+1}, v{OO+4*t+2}, v{OO+4*t+3}"]
            onp=lambda t:[f"v_pk_mul_f32 {vr(OO+4*t+r,2)}, {vr(OO+4*t+r,2)}, {vr(sm,2)} op_sel_hi:[1,0]" for r in (0,2)]+onm(t)[4:]
            ost=lambda k: f"buffer_store_dwordx4 {vr(vOP+4*k,4)}, v{vOST}, {ws}, {t1} offen offset:{128*k} {loc}"
            E([sux, f"v_permlane32_swap_b32 v{M}, v{e2}", pvx[0], f"v_cvt_pk_bf16_f32 v{M}, v{M}, v{e2}",
               pvx[1], shl(M+1,M), pvx[2], sum_, pvm[0], pvm[1], f"v_rcp_f32 v{sm}, v{SUM}"])
            E(weave([pvx[3],pvm[2],pvm[3]], onm(0)+onm(1)))
            E([ost(0)]+onp(2)+onp(3)+[ost(1)])
            E(stamp("pv"))
        a(";AUTOLGKM_OFF")
        a("s_barrier")
        E(stamp("bar2b"))
        g_ld=[f"buffer_load_dwordx4 {vr(vG+4*i,4)}, v{vL16}, {ws}, {S['oG4'] if i>=4 else S['oG']} offen offset:{(i%4)*1024} sc1" for i in range(6)]
        wsm=lambda i:[f"v_smfmac_f32_16x16x64_bf16 {vr(vAV+4*u,4)}, {vr(vG+4*i,4)}, {woreg(i,u)}, v{vIDX}" for u in range(2)]
        def gchk(i,n,top):
            d0,d1=vG+4*i,vG+4*(i+n-1); lab=L(f"G{i}")
            wt=f"s_waitcnt vmcnt({top-i-n})"; cm=f"v_cmp_u_f32 vcc, v{d0}, v{d1}"
            slow.extend([lab+"_r:", wt, cm, f"s_cbranch_vccz {lab}_c",
                         lab+"_s:"]+g_ld[i:top]+cnt("nB")+tmo()+often(lab+"_r")+exact([d0,d1],lab+"_s")+[f"s_branch {lab}_c"])
            return [wt,cm], [f"s_cbranch_vccnz {lab}_s", lab+"_c:"]
        E(delay(cfg.get("dG",24)))
        for i in range(6):
            a(g_ld[i])
            if i<5: E(delay(cfg.get("dG2",8)))
        prev=[]
        for i,n in cfg.get("gGrp",((0,2),(2,2),(4,1),(5,1))):
            c0,c1=gchk(i,n,6)
            E(prev[:-2]+c0+prev[-2:]+c1)
            prev=sum((wsm(k) for k in range(i,i+n)),[])
        E(prev)
        E(stamp("wo"))
        RD=vR; RC=vM; FD=vS
        fchk=[] if cfg.get("noflag") else [f"v_cmp_gt_u32 vcc, {h3}, v{vFLG}", f"s_cbranch_vccnz @_s", "@_c:"]
        def side(tag):
            lab=L("F"+tag)
            if fchk: slow.extend([lab+"_s:", ldF]+tmo()+["s_waitcnt vmcnt(0)", fchk[0], f"s_cbranch_vccnz {lab}_s", f"s_branch {lab}_c"])
            return [x.replace("@",lab) for x in fchk], dm+pub[1:]
        for u in range(2):
            A=vAV+4*u
            E([f"v_cvt_pk_bf16_f32 v{A}, v{A}, v{A+1}", f"v_cvt_pk_bf16_f32 v{A+1}, v{A+2}, v{A+3}", f"ds_write_b64 v{vRW}, {vr(A,2)} offset:{u*256}"])
        a("s_waitcnt lgkmcnt(0)")
        a("s_barrier")
        for h in range(2): a(f"ds_read_b128 {vr(vG+4*h,4)}, v{vRR} offset:{h*512}")
        for h in range(2):
            a(f"s_waitcnt lgkmcnt({1-h})")
            a(f"v_mfma_f32_16x16x32_bf16 {vr(RD,4)}, {vr(vG+4*h,4)}, {vr(vSEL,4)}, {vr(RD,4) if h else 0}")
        a(f"s_add_u32 {t2}, {oC}, {4*CCOPY}")
        a(f"v_cvt_pk_bf16_f32 v{vE}, v{RD}, v{RD+1}")
        a(f"v_cvt_pk_bf16_f32 v{vE+1}, v{RD+2}, v{RD+3}")
        a(f"buffer_store_dwordx2 {vr(vE,2)}, v{vCST}, {ws}, {oC} offen sc1")
        E(stamp("C_st"))
        n0=cfg.get("n0",4)
        ldC=lambda k: f"s_add_u32 {t0}, {oC}, {k*CCOPY}\nbuffer_load_dwordx4 {vr(RC+4*(k%n0),4)}, v{vCLD}, {ws}, {t0} offen sc1"
        mC=lambda k: f"v_mfma_f32_16x16x32_bf16 {vr(FD,4)}, {vr(vSEL,4)}, {vr(RC+4*(k%n0),4)}, {vr(RD,4)}"
        cC=lambda k: f"v_cmp_u_f32 vcc, v{RC+4*(k%n0)}, v{RC+4*(k%n0)+2}"
        f0,f1=side("a")
        if w==0: f1+=[f"s_xor_b32 {t1}, {S['fa']}, 65536\ns_add_u32 {t1}, {t1}, {bB}\nbuffer_store_dwordx4 {SE4}, v{vL16}, {ws}, {t1} offen {loc}"]
        if w==1: f1+=[f"buffer_store_dwordx4 {SE4}, v{vL16}, {ws}, {h1} offen {loc}"]
        if w==2: f1+=[f"buffer_store_dword v{vSENT}, v{vL4}, {ws}, {h1} offen offset:1024 {loc}"]
        nside=len(f1)
        E(f0)
        if NCP>4: a(f"buffer_store_dwordx2 {vr(vE,2)}, v{vCST}, {ws}, {t2} offen sc1")
        E(delay(cfg.get("dC",16)))
        seq=[]
        for k in range(n0):
            a(ldC(k)); seq.append(k)
            if k<n0-1:
                d=cfg.get("dC2",28)
                if f1 and not cfg.get("sideLate"): E(delay(d//2)); a(f1.pop(0)); seq.append(-1); E(delay(d-d//2-1))
                else: E(delay(d))
        for x in f1: a(x); seq.append(-1)
        younger=lambda k: len(seq)-1-seq.index(k)
        E([f"s_waitcnt vmcnt({younger(0)})", cC(0), mC(0), f"s_cbranch_vccnz {L('C_t')}"])
        sC=[L("C_t")+":"]
        for k in range(1,NCP):
            if k-1+n0<NCP: sC.append(ldC(k-1+n0)); seq.append(k-1+n0)
            sC+=cnt("nC")+[f"s_waitcnt vmcnt({younger(k)})", cC(k), mC(k), f"s_cbranch_vccz {L('C_c')}"]
        slow.extend(sC+[L("C_x")+":", ldC(0)]+cnt("nC")+tmo()+often(L("C_r"))+exact([RC,RC+2],L("C_x"))+[mC(0), f"s_branch {L('C_c')}",
                     L("C_r")+":", "s_waitcnt vmcnt(0)", cC(0), mC(0), f"s_cbranch_vccz {L('C_c')}", f"s_branch {L('C_x')}"])
        a.label(L("C_c"))
        a(f"v_cvt_pk_bf16_f32 v{vE}, v{FD}, v{FD+1}")
        a(f"v_cvt_pk_bf16_f32 v{vE+1}, v{FD+2}, v{FD+3}")
        a(f"buffer_store_dwordx2 {vr(vE,2)}, v{vDST}, {ws}, {S['oDw']} offen {loc}")
        E(stamp("D_st"))
        ndm=[i for i,x in enumerate(seq) if x==-1][1]
        a(f"s_waitcnt vmcnt({n0+nside-1-ndm+1})")
        a.label(L("join"))
        if stamps:
            a(f"s_cmp_eq_u32 {sstep}, {cfg.get('stamp_step',40)}")
            a(f"s_cbranch_scc0 {L('nostamp')}")
            a("s_waitcnt lgkmcnt(0)")
            a(f"s_lshl_b32 {t0}, {scu}, 9")
            a(f"s_add_u32 {t0}, {t0}, {WS_DBG+w*128}")
            for i in range(len(names)):
                a(f"v_mov_b32 v{vT}, s{ST0+2*i if i<8 else 84+2*(i-8)}")
                a(f"buffer_store_dword v{vT}, off, {ws}, {t0} offset:{4*i}")
            a.label(L("nostamp"))
        if cfg.get("steplog") and w==1:
            a("s_memrealtime s[96:97]")
            a(f"s_lshl_b32 s98, {scu}, 6")
            a(f"s_add_u32 s98, s98, {sstep}")
            a(f"s_lshl_b32 s98, s98, 2")
            a(f"s_add_u32 s98, s98, {WS_DBG+0x40000}")
            a("s_waitcnt lgkmcnt(0)")
            a(f"v_mov_b32 v{vT}, s96")
            a(f"buffer_store_dword v{vT}, off, {ws}, s98")
        a(f"s_add_u32 {sstep}, {sstep}, 1")
        a("s_barrier")
        a(f"s_branch {L('loop')}")
        a.label(L("fin"))
        a("s_waitcnt lgkmcnt(0)")
        E(pub)
        if cfg.get("rec"): cfg["rec"](a,3)
        a("s_endpgm")
        E(slow)
    return loop
```

```python
from asmlib import *
from layout import *
import struct, math
def f32(x): return struct.unpack("<I",struct.pack("<f",x))[0]
def lo(r): return int(r[2:].split(":")[0]) if r.startswith("s[") else int(r[1:])
sWS="s[4:7]"; sDBG="s[8:9]"; sROLE="s10"; sMODE="s11"; sTMO="s12"; sW="s13"; sXB="s14"
S_FIRST=16
def emit(a,lst):
    for l in lst: a(l)
def delay(n):
    o=[]
    while n>0:
        k=min(n,16); o.append(f"s_nop {k-1}"); n-=k
    return o
def tmo(): return [f"s_sub_u32 {sTMO}, {sTMO}, 1", "s_cbranch_scc1 L_abort"]
def srd(a, r, karg, nbytes):
    b=lo(r)
    a(f"s_load_dwordx2 {sr(b,2)}, s[0:1], {karg}")
    a(f"s_mov_b32 s{b+2}, {nbytes}")
    a(f"s_mov_b32 s{b+3}, 0x20000")
def dbg_add(a, dword, val, vt, sreg_off=None):
    if sreg_off is None: a(f"v_mov_b32 v{vt}, {4*dword}")
    else:
        a(f"v_mov_b32 v{vt}, {sreg_off}")
        a(f"v_lshlrev_b32 v{vt}, 2, v{vt}")
        a(f"v_add_u32 v{vt}, {4*dword}, v{vt}")
    a(f"v_mov_b32 v{vt+1}, {val}")
    a("s_mov_b64 exec, 1")
    a(f"global_atomic_add v{vt}, v{vt+1}, {sDBG}")
    a("s_mov_b64 exec, -1")
def dbg_wait(a, dword, val, vt, lab, sleep=8):
    a(f"v_mov_b32 v{vt}, {4*dword}")
    a.label(lab)
    a(f"global_load_dword v{vt+1}, v{vt}, {sDBG} sc1")
    emit(a,tmo())
    a("s_waitcnt vmcnt(0)")
    a(f"v_cmp_eq_u32 vcc, {val}, v{vt+1}")
    a(f"s_cbranch_vccnz {lab}_ok")
    a(f"s_sleep {sleep}")
    a(f"s_branch {lab}")
    a.label(lab+"_ok")
def confirm_mode(a, lab, vt, lane="v0"):
    a(f"v_lshlrev_b32 v{vt}, 2, {lane}")
    a.label(lab)
    a(f"global_load_dword v{vt+1}, v{vt}, {sDBG} sc1")
    emit(a,tmo())
    a(f"s_add_u32 s85, {sMODE}, {D_INIT}")
    a(f"s_cmp_eq_u32 {sMODE}, 1")
    a("s_waitcnt vmcnt(0)")
    a(f"s_cbranch_scc1 {lab}_m")
    a(f"v_cmp_eq_u32 vcc, 32, v{vt+1}")
    a("s_and_b32 s86, vcc_lo, vcc_hi")
    a("s_and_b32 s86, s86, 0x01010101")
    a("s_cmp_eq_u32 s86, 0x01010101")
    a(f"s_cbranch_scc1 {lab}_m")
    a(f"v_readlane_b32 s86, v{vt+1}, {D_OVER}")
    for x in range(8):
        a(f"v_readlane_b32 s87, v{vt+1}, {8*x}")
        a("s_add_u32 s86, s86, s87")
    a("s_cmp_eq_u32 s86, 256")
    a("s_cbranch_scc1 L_generic")
    a.label(lab+"_z")
    a("s_sleep 4")
    a(f"s_branch {lab}")
    a.label(lab+"_m")
    a(f"v_readlane_b32 s84, v{vt+1}, s85")
    a("s_and_b32 s86, s84, 0xffff")
    a("s_cmp_eq_u32 s86, 128")
    a(f"s_cbranch_scc0 {lab}_z")

def hold(a, lab, vt, st):
    a(f"s_add_u32 {st}, {sXB}, {F_G1+12}")
    a.label(lab)
    a(f"buffer_load_dword v{vt}, off, {sWS}, {st} sc1")
    emit(a,tmo())
    a("s_waitcnt vmcnt(0)")
    a(f"v_cmp_eq_u32 vcc, 0, v{vt}")
    a(f"s_cbranch_vccz {lab}_ok")
    a("s_sleep 8")
    a(f"s_branch {lab}")
    a.label(lab+"_ok")
```

```python
from common import *
vL16=1; vZ=2; vFL=3; vTAG=4; vNEG=5; vT=6
vKM=16; vVM=40
vS=52
vP=64
vO=72
vSET=128
vG1=112; vLD=113
SLOT=36864
def gen_g4(a,cfg):
    al=SAlloc(S_FIRST,83); S={}
    for i in range(8): S[f"m{i}"]=al(f"m{i}",2)
    for n in ("h","qt","eh","s","t0","t1","t2","t3","bq","bk","bv","bo","bkm","fg1","fo","fl","cexp","v0","v1","v2","okm","g1"): S[n]=al(n)
    t0,t1,t2,t3,s=S["t0"],S["t1"],S["t2"],S["t3"],S["s"]
    a.label("L4_start")
    a(f"s_lshr_b32 {t0}, {sROLE}, 5")
    a(f"s_lshl_b32 {t0}, {t0}, 3")
    a(f"s_and_b32 {t1}, {sROLE}, 7")
    a(f"s_add_u32 {S['h']}, {t0}, {t1}")
    a(f"s_lshr_b32 {S['qt']}, {sW}, 1")
    a(f"s_and_b32 {S['eh']}, {sW}, 1")
    a(f"v_lshlrev_b32 v{vL16}, 4, v0")
    a(f"v_mov_b32 v{vZ}, 0")
    a(f"s_lshl_b32 {t0}, {S['h']}, 2")
    a(f"s_add_u32 {t0}, {t0}, {sW}")
    a(f"s_lshl_b32 {t0}, {t0}, 6")
    a(f"s_add_u32 {t0}, {t0}, {sXB}")
    a(f"s_add_u32 {t0}, {t0}, {X_CAL}")
    a(f"s_add_u32 {t1}, {t0}, 8192")
    a(f"v_mov_b32 v{vT}, 1")
    a(f"buffer_store_dword v{vT}, v{vZ}, {sWS}, {t0} offen sc1")
    a(f"buffer_store_dword v{vT}, v{vZ}, {sWS}, {t1} offen sc1")
    a(f"s_mov_b32 {t2}, 0")
    a("s_waitcnt vmcnt(0)")
    for k in range(4):
        a("s_mov_b32 s84, 0")
        a("s_mov_b32 s85, 0")
        ls=[f"s_load_dword s84, s[4:5], {t0} glc", f"s_load_dword s85, s[4:5], {t1} glc"]
        emit(a, ls if k%2==0 else ls[::-1])
        a("s_waitcnt lgkmcnt(1)")
        a(f"s_sub_u32 {t3}, s85, s84")
        a("s_waitcnt lgkmcnt(0)")
        a(f"s_add_u32 {t2}, {t2}, {t3}")
    a(f"s_add_u32 {t2}, {t2}, 4")
    a(f"s_lshl_b32 {t2}, {t2}, 16")
    a(f"s_add_u32 {t2}, {t2}, 1")
    srd(a,"s[88:91]",8,10240)
    for i in range(4): a(f"v_mov_b32 v{vKM+i}, {SENT:#x}")
    a(f"s_lshl_b32 {t0}, {S['h']}, 2")
    a(f"s_add_u32 {t0}, {t0}, {sW}")
    a(f"s_lshl_b32 {t1}, {t0}, 6")
    a(f"s_add_u32 {t1}, {t1}, {sXB}")
    a(f"s_add_u32 {t1}, {t1}, {X_FLAG}")
    a(f"v_lshlrev_b32 v{vT+2}, 2, v0")
    a("s_mov_b64 exec, 0xffff")
    a(f"buffer_store_dword v{vZ}, v{vT+2}, {sWS}, {t1} offen sc1")
    a("s_mov_b64 exec, -1")
    def fill(n,fl):
        for i in range(n):
            if i and i%4==0: a(f"s_add_u32 {t1}, {t1}, 4096")
            a(f"buffer_store_dwordx4 {vr(vKM,4)}, v{vL16}, {sWS}, {t1} offen offset:{(i%4)*1024} {fl}")
    a(f"s_mul_i32 {t1}, {t0}, {11*1024}")
    a(f"s_add_u32 {t1}, {t1}, {sXB}")
    fill(11,"sc1")
    a(f"s_lshr_b32 {t1}, {t0}, 5")
    a(f"s_mul_i32 {t1}, {t1}, {LSTR-32*19*1024}")
    a(f"s_mul_i32 {t3}, {t0}, {19*1024}")
    a(f"s_add_u32 {t1}, {t1}, {t3}")
    a(f"s_add_u32 {t1}, {t1}, {sXB}")
    a(f"s_add_u32 {t1}, {t1}, {X_L}")
    a(f"s_cmp_eq_u32 {sMODE}, 0")
    a("s_cbranch_scc0 L4_fg")
    fill(19,"")
    a("s_branch L4_fx")
    a.label("L4_fg")
    fill(19,"sc1")
    a.label("L4_fx")
    a(f"s_and_b32 {t1}, {S['h']}, 7")
    a("s_cbranch_scc1 L4_nod")
    a(f"v_and_b32 v{vT+2}, 7, v0")
    a(f"v_lshrrev_b32 v{vT+3}, 3, v0")
    a(f"v_mul_u32_u24 v{vT+2}, 1280, v{vT+2}")
    a(f"v_lshl_add_u32 v{vT+2}, v{vT+3}, 4, v{vT+2}")
    a(f"s_cmp_eq_u32 {sW}, 0")
    a("s_cbranch_scc0 L4_ds")
    a("s_waitcnt lgkmcnt(0)")
    for i in range(10): a(f"buffer_load_dwordx4 {vr(vO+4*i,4)}, v{vT+2}, s[88:91], 0 offen offset:{i*128}")
    a(f"v_mov_b32 v{vT+3}, 0x7fc17fc1")
    a("s_waitcnt vmcnt(0)")
    for i in range(20):
        a(f"v_cmp_eq_u32 vcc, v{vKM}, v{vO+2*i}")
        a(f"v_cndmask_b32 v{vO+2*i}, v{vO+2*i}, v{vT+3}, vcc")
    a("s_branch L4_dw")
    a.label("L4_ds")
    for i in range(20): a(f"v_mov_b64 {vr(vO+2*i,2)}, {vr(vKM,2)}")
    a.label("L4_dw")
    a(f"s_lshl_b32 {t1}, {S['h']}, 13")
    a(f"s_lshl_b32 {t3}, {sW}, 14")
    a(f"s_add_u32 {t1}, {t1}, {t3}")
    a(f"s_add_u32 {t1}, {t1}, {sXB}")
    a(f"s_add_u32 {t1}, {t1}, {X_D}")
    for i in range(10):
        if i and i%4==0: a(f"s_add_u32 {t1}, {t1}, 4096")
        a(f"buffer_store_dwordx4 {vr(vO+4*i,4)}, v{vL16}, {sWS}, {t1} offen offset:{(i%4)*1024} sc1")
    a.label("L4_nod")
    a("s_waitcnt vmcnt(0) lgkmcnt(0)")
    dbg_add(a,D_INIT,t2,vT,sMODE)
    if cfg.get("wo_pf",1):
        srd(a,"s[88:91]",40,7864320)
        a(f"s_and_b32 {t0}, {S['h']}, 7")
        a(f"s_mul_i32 {t0}, {t0}, {8*1280}")
        a(f"s_lshr_b32 {t1}, {S['h']}, 3")
        a(f"s_lshl_b32 {t1}, {t1}, 2")
        a(f"s_add_u32 {t1}, {t1}, {sW}")
        a(f"s_mul_i32 {t1}, {t1}, {384*1280}")
        a(f"s_add_u32 {t0}, {t0}, {t1}")
        a("s_waitcnt lgkmcnt(0)")
        for i in range(6):
            for q in range(10):
                if q%4==0: a(f"s_add_u32 {t1}, {t0}, {i*64*1280+q*1024}")
                a(f"buffer_load_dwordx4 {vr(vSET+4*((10*i+q)%24),4)}, v{vL16}, s[88:91], {t1} offen offset:{(q%4)*1024} {cfg.get('pf_flav','')}")
        a("s_waitcnt vmcnt(0)")
    a(f"s_mul_i32 {t0}, {S['h']}, 12288")
    a(f"s_mul_i32 {S['bk']}, {sW}, 3072")
    a(f"s_add_u32 {S['bq']}, {t0}, {S['bk']}")
    a(f"s_mul_i32 {t1}, {S['eh']}, 6144")
    a(f"s_add_u32 {t1}, {t1}, {t0}")
    a(f"s_lshr_b32 {t2}, {S['h']}, 3")
    a(f"s_mul_i32 {t2}, {t2}, {LSTR-24*4096}")
    a(f"s_add_u32 {t0}, {t0}, {t2}")
    a(f"s_add_u32 {t0}, {t0}, {sXB}")
    a(f"s_add_u32 {S['bkm']}, {t0}, {X_L+L_KVM}")
    a(f"s_lshr_b32 {t1}, {t1}, 1")
    a(f"s_mul_i32 {t0}, {S['qt']}, {192*1024}")
    a(f"s_add_u32 {t0}, {t0}, {t1}")
    a(f"s_add_u32 {S['bo']}, {t0}, {WS_O}")
    for i in range(3):
        o0=(i>>1)*4096+2048+(i&1)*1024; p=3+i; o1=(p>>1)*4096+2048+(p&1)*1024
        a(f"s_mul_i32 {S['v%d'%i]}, {S['eh']}, {o1-o0}")
        a(f"s_add_u32 {S['v%d'%i]}, {S['v%d'%i]}, {o0}")
    a(f"s_lshl_b32 {t0}, {S['h']}, 6")
    a(f"s_add_u32 {t0}, {t0}, {sXB}")
    a(f"s_add_u32 {S['fg1']}, {t0}, {F_G1}")
    a(f"s_lshl_b32 {t0}, {S['h']}, 7")
    a(f"s_add_u32 {t0}, {t0}, {sXB}")
    a(f"s_add_u32 {S['fl']}, {t0}, {F_L}")
    a(f"s_lshl_b32 {t0}, {S['qt']}, 6")
    a(f"s_lshl_b32 {t1}, {S['h']}, 1")
    a(f"s_add_u32 {t0}, {t0}, {t1}")
    a(f"s_add_u32 {t0}, {t0}, {S['eh']}")
    a(f"s_lshl_b32 {t0}, {t0}, 2")
    a(f"s_add_u32 {t0}, {t0}, {sXB}")
    a(f"s_add_u32 {S['fo']}, {t0}, {F_O}")
    a(f"v_min_u32 v{vT}, 8, v0")
    a(f"v_lshlrev_b32 v{vFL}, 2, v{vT}")
    sc=192**-0.5
    a(f"s_mov_b32 {S['cexp']}, {f32(sc*math.log2(math.e)):#x}")
    a(f"v_mov_b32 v{vNEG}, {f32(-1e9/sc):#x}")
    a(f"v_and_b32 v{vT}, 15, v0")
    a(f"s_lshl_b32 {t0}, {S['qt']}, 4")
    a(f"v_add_u32 v{vT}, {t0}, v{vT}")
    a(f"v_lshrrev_b32 v{vT+1}, 4, v0")
    a(f"v_lshlrev_b32 v{vT+1}, 2, v{vT+1}")
    for i in range(8):
        a(f"v_add_u32 v{vT+2}, {16*(i>>2)+(i&3)}, v{vT+1}")
        a(f"v_cmp_le_u32 {S['m%d'%i]}, v{vT+2}, v{vT}")
    a(f"s_mov_b32 {S['g1']}, 0")
    confirm_mode(a,"L4_cm",vT)
    uid=[0]
    ldg=f"buffer_load_dword v{vG1}, v{vFL}, {sWS}, {S['fg1']} offen sc1"
    def wait_g1(seg):
        uid[0]+=1; lab=f"L4_g{uid[0]}"
        a.label(lab)
        a(f"v_cmp_ge_u32 vcc, {seg}, v{vG1}")
        a(f"s_cbranch_vccz {lab}_ok")
        a("s_sleep 2")
        a(ldg)
        emit(a,tmo())
        a("s_waitcnt vmcnt(0)")
        a(f"s_branch {lab}")
        a.label(lab+"_ok")
    def load_set(seg):
        a(f"s_mul_i32 {t0}, {seg}, {SEG_STRIDE}")
        a(f"s_add_u32 {t0}, {t0}, {S['bq']}")
        a(f"s_and_b32 {t1}, {seg}, 3")
        a(f"s_mul_i32 {t1}, {t1}, {SLOT}")
        a(f"s_add_u32 {t1}, {t1}, {S['bk']}")
        for m in (1,2,0):
            a(f"s_add_u32 {t3}, {t0}, {m*(WS_K-WS_Q)}")
            a(f"s_add_u32 m0, {t1}, {m*12288}")
            for f in range(3): a(f"buffer_load_dwordx4 v{vL16}, {sWS}, {t3} offen offset:{f*1024} sc1 lds")
    def flag_l(val):
        uid[0]+=1; lab=f"L4_f{uid[0]}"
        a("s_barrier")
        a(f"s_cmp_eq_u32 {sW}, 0")
        a(f"s_cbranch_scc0 {lab}")
        a(f"v_mov_b32 v{vT}, {val}")
        a(f"s_cmp_eq_u32 {sMODE}, 0")
        a(f"s_cbranch_scc0 {lab}_g")
        a(f"buffer_store_dword v{vT}, v{vZ}, {sWS}, {S['fl']} offen")
        a(f"s_branch {lab}")
        a.label(lab+"_g")
        a(f"buffer_store_dword v{vT}, v{vZ}, {sWS}, {S['fl']} offen sc1")
        a.label(lab)
    a(f"v_mov_b32 v{vG1}, 0")
    for k in range(3):
        a(f"s_mov_b32 {s}, {k}")
        wait_g1(s); load_set(s); a("s_waitcnt vmcnt(0)"); flag_l(k+1)
    a(f"s_mov_b32 {s}, 0")
    D0,D1,Dm=vS,vS+4,vS+8; X,M=vP,vP+4
    mx,tp,sm,e0=vT,vT+1,vT+2,vT+4
    for k in range(1):
        L=lambda n: f"L4_{n}{k}"
        a.label(L("it"))
        Q=lambda ks:vr(vSET+4*ks,4); K=lambda ks,kt:vr(vSET+24+4*(2*ks+kt),4); V=lambda t:vr(vSET+72+4*t,4)
        a(";AUTOLGKM_ON")
        a(f"s_and_b32 {t0}, {s}, 3")
        a(f"s_mul_i32 {t0}, {t0}, {SLOT}")
        a(f"v_add_u32 v{vLD}, {t0}, v{vL16}")
        a(f"v_lshl_add_u32 v{vLD+1}, {S['qt']}, 10, v{vLD}")
        a(f"s_mul_i32 {t1}, {S['eh']}, 6144")
        a(f"v_add_u32 v{vLD+2}, {t1}, v{vLD}")
        for ks in range(6):
            a(f"ds_read_b128 {Q(ks)}, v{vLD+1} offset:{ks*2048}")
            for kt in range(2): a(f"ds_read_b128 {K(ks,kt)}, v{vLD} offset:{12288+(2*ks+kt)*1024}")
        for t in range(6): a(f"ds_read_b128 {V(t)}, v{vLD+2} offset:{24576+t*1024}")
        for ks in range(6):
            for kt in range(2):
                D=vr(vS+4*kt,4)
                a(f"v_mfma_f32_16x16x32_bf16 {D}, {K(ks,kt)}, {Q(ks)}, {D if ks else 0}")
        a("s_waitcnt lgkmcnt(0)")
        a(";AUTOLGKM_OFF")
        a(f"s_and_b32 {t0}, {s}, 3")
        a(f"s_mul_i32 {t0}, {t0}, {KVM_RING}")
        a(f"s_add_u32 {S['okm']}, {t0}, {S['bkm']}")
        a(f"s_bfe_u32 {t0}, {s}, 0x10002")
        a(f"v_mov_b32 v{vTAG}, {t0}")
        for i in range(8): a(f"v_cndmask_b32 v{vS+i}, v{vNEG}, v{vS+i}, {S['m%d'%i]}")
        a.label(L("p"))
        a(f"buffer_load_dwordx4 {vr(vKM,4)}, v{vL16}, {sWS}, {S['okm']} offen sc1")
        emit(a,tmo())
        a("s_waitcnt vmcnt(0)")
        a(f"v_xor_b32 v{vT}, v{vKM}, v{vTAG}")
        a(f"v_and_b32 v{vT}, 1, v{vT}")
        a(f"v_cmp_ne_u32 vcc, 0, v{vT}")
        a(f"s_cbranch_vccz {L('q')}")
        a("s_sleep 2")
        a(f"s_branch {L('p')}")
        a.label(L("q"))
        for f in range(1,6):
            a(f"s_add_u32 {t1}, {S['okm']}, {(f>>1)*4096+(f&1)*1024}")
            a(f"buffer_load_dwordx4 {vr(vKM+4*f,4)}, v{vL16}, {sWS}, {t1} offen sc1")
        for i in range(3):
            a(f"s_add_u32 {t1}, {S['okm']}, {S['v%d'%i]}")
            a(f"buffer_load_dwordx4 {vr(vVM+4*i,4)}, v{vL16}, {sWS}, {t1} offen sc1")
        emit(a,tmo())
        a("s_waitcnt vmcnt(0)")
        a(f"v_xor_b32 v{vT}, v{vKM+4}, v{vTAG}")
        for f in range(2,9): a(f"v_bitop3_b32 v{vT}, v{vT}, v{vKM+4*f}, v{vTAG} bitop3:0xf6")
        a(f"v_and_b32 v{vT}, 1, v{vT}")
        a(f"v_cmp_ne_u32 vcc, 0, v{vT}")
        a(f"s_cbranch_vccnz {L('q')}")
        a("s_barrier")
        a(f"s_add_u32 {t2}, {s}, 3")
        a(f"s_cmp_ge_u32 {t2}, 64")
        a(f"s_cbranch_scc1 {L('n')}")
        wait_g1(t2); load_set(t2); a(ldg)
        a.label(L("n"))
        for ks in range(6):
            a(f"v_mfma_f32_16x16x32_bf16 {vr(Dm,4)}, {vr(vKM+4*ks,4)}, {Q(ks)}, {vr(Dm,4) if ks else 0}")
        a(f"v_max3_f32 v{mx}, v{vS}, v{vS+1}, v{vS+2}")
        a(f"v_max3_f32 v{mx}, v{mx}, v{vS+3}, v{vS+4}")
        a(f"v_max3_f32 v{mx}, v{mx}, v{vS+5}, v{vS+6}")
        a(f"v_max_f32 v{mx}, v{mx}, v{vS+7}")
        for r in range(4): a(f"v_mov_b32 v{e0+r}, v{Dm+r}")
        for r in range(4): a(f"v_permlane32_swap_b32 v{Dm+r}, v{e0+r}")
        for r in range(4): a(f"v_add_f32 v{Dm+r}, v{Dm+r}, v{e0+r}")
        a(f"v_max3_f32 v{mx}, v{mx}, v{Dm}, v{Dm+1}")
        a(f"v_max3_f32 v{mx}, v{mx}, v{Dm+2}, v{Dm+3}")
        def xl(r,op):
            for sw in ("16","32"):
                a(f"v_mov_b32 v{tp}, v{r}")
                a(f"v_permlane{sw}_swap_b32 v{r}, v{tp}")
                a(f"{op} v{r}, v{r}, v{tp}")
        xl(mx,"v_max_f32")
        a(f"v_mul_f32 v{mx}, {S['cexp']}, v{mx}")
        for i in range(12): a(f"v_fma_f32 v{vS+i}, v{vS+i}, {S['cexp']}, -v{mx}")
        for i in range(12): a(f"v_exp_f32 v{vS+i}, v{vS+i}")
        a(f"v_add_f32 v{sm}, v{Dm}, v{Dm+1}")
        a(f"v_add_f32 v{sm}, v{sm}, v{Dm+2}")
        a(f"v_add_f32 v{sm}, v{sm}, v{Dm+3}")
        a(f"v_mul_f32 v{sm}, 0.5, v{sm}")
        for i in range(8): a(f"v_add_f32 v{sm}, v{sm}, v{vS+i}")
        xl(sm,"v_add_f32")
        a(f"v_rcp_f32 v{sm}, v{sm}")
        for i in range(12): a(f"v_mul_f32 v{vS+i}, v{vS+i}, v{sm}")
        for i in range(6): a(f"v_cvt_pk_bf16_f32 v{vP+i}, v{vS+2*i}, v{vS+2*i+1}")
        for t in range(6):
            a(f"v_mfma_f32_16x16x32_bf16 {vr(vO+4*t,4)}, {V(t)}, {vr(X,4)}, 0")
        for t in range(6):
            a(f"v_mfma_f32_16x16x16_bf16 {vr(vO+4*t,4)}, {vr(vVM+2*t,2)}, {vr(M,2)}, {vr(vO+4*t,4)}")
        a(f"s_mul_i32 {t0}, {s}, {SEG_STRIDE}")
        a(f"s_add_u32 {t0}, {t0}, {S['bo']}")
        for i in range(3):
            A=vO+8*i
            for j in range(4): a(f"v_cvt_pk_bf16_f32 v{A+j}, v{A+2*j}, v{A+2*j+1}")
            a(f"buffer_store_dwordx4 {vr(A,4)}, v{vL16}, {sWS}, {t0} offen offset:{i*1024} sc1")
        a(f"s_add_u32 {s}, {s}, 1")
        a(f"v_mov_b32 v{vT+1}, {s}")
        a("s_waitcnt vmcnt(0)")
        a(f"buffer_store_dword v{vT+1}, v{vZ}, {sWS}, {S['fo']} offen sc1")
        a(f"s_cmp_eq_u32 {s}, 64")
        a("s_cbranch_scc1 L4_end")
        a(f"s_add_u32 {t2}, {s}, 3")
        flag_l(t2)
    a("s_branch L4_it0")
    a.label("L4_end")
    if cfg.get("rec"): cfg["rec"](a,3)
    a("s_endpgm")
```

```python
from common import *
import gemm
vL16=1; vOUT=2; vFL=3; vT=4
vACC=12
vR=28
vRED=76
vTR=92
NR=12
def wreg(ks,t,n=4,o=0):
    i=(ks*4+t)*4+o
    return ar(i,n) if i<256 else vr(128+i-256,n)
def gen_g5(a,cfg):
    al=SAlloc(S_FIRST,83); S={}
    for n in ("srdW","srdO","srdP"): S[n]=al(n,4)
    for n in ("th","cg","kh","id","s","t0","t1","t2","t3","lw","src","nsrc","flag","out","par","wb","go","xw","xr","kq"): S[n]=al(n)
    G=[al(f"g{i}") for i in range(6)]
    t0,t1,t2,t3,s=S["t0"],S["t1"],S["t2"],S["t3"],S["s"]
    a.label("L5_start")
    a(f"s_lshr_b32 {t0}, {sROLE}, 5")
    a(f"s_sub_u32 {t0}, {t0}, 4")
    a(f"s_lshr_b32 {S['th']}, {t0}, 1")
    a(f"s_and_b32 {t1}, {sROLE}, 31")
    a(f"s_sub_u32 {t1}, {t1}, 18")
    a(f"s_mul_i32 {t2}, {t0}, 10")
    a(f"s_add_u32 {S['id']}, {t2}, {t1}")
    a(f"s_and_b32 {S['kh']}, {t1}, 1")
    a(f"s_lshr_b32 {t1}, {t1}, 1")
    a(f"s_and_b32 {t0}, {t0}, 1")
    a(f"s_mul_i32 {t0}, {t0}, 5")
    a(f"s_add_u32 {S['cg']}, {t0}, {t1}")
    a(f"s_lshl_b32 {t0}, {S['kh']}, 2")
    a(f"s_add_u32 {S['kq']}, {t0}, {sW}")
    srd(a,S['srdW'],40,7864320)
    srd(a,S['srdO'],80,2048*2560)
    for i in range(6):
        a(f"s_add_u32 {t2}, {t1}, {i}")
        a(f"s_cmp_ge_u32 {t2}, 6")
        a(f"s_cselect_b32 {t3}, 6, 0")
        a(f"s_sub_u32 {t2}, {t2}, {t3}")
        a(f"s_lshl_b32 {G[i]}, {t2}, 12")
    a(f"v_lshlrev_b32 v{vL16}, 4, v0")
    a(f"v_lshrrev_b32 v{vT}, 3, v0")
    a(f"v_and_b32 v{vT+1}, 7, v0")
    a(f"v_xor_b32 v{vT+1}, v{vT+1}, v{vT}")
    a(f"v_mul_u32_u24 v{vT}, 1280, v{vT}")
    a(f"v_lshl_add_u32 v{vT+2}, v{vT+1}, 4, v{vT}")
    a(f"s_lshl_b32 {S['lw']}, {sW}, 15")
    a(f"v_lshrrev_b32 v{vT}, 2, v0")
    a(f"v_and_b32 v{vT+1}, 7, v{vT}")
    a(f"v_lshl_add_u32 v{vT}, v{vT}, 7, {S['lw']}")
    a(f"v_and_b32 v{vT+3}, 1, v0")
    a(f"v_lshl_add_u32 v{vT}, v{vT+3}, 3, v{vT}")
    a(f"v_bfe_u32 v{vT+3}, v0, 1, 1")
    for t in range(4):
        a(f"v_add_u32 v{vT+4}, {2*t}, v{vT+3}")
        a(f"v_xor_b32 v{vT+4}, v{vT+4}, v{vT+1}")
        a(f"v_lshl_add_u32 v{vTR+t}, v{vT+4}, 4, v{vT}")
    a(f"s_mul_i32 {t3}, {S['kq']}, {768*1280}")
    a(f"s_lshl_b32 {t0}, {S['cg']}, 7")
    a(f"s_add_u32 {S['wb']}, {t3}, {t0}")
    a("s_waitcnt lgkmcnt(0)")
    def dma(b):
        a(f"s_mul_i32 {t3}, {G[b//2]}, 40")
        a(f"s_add_u32 {t3}, {t3}, {S['wb']}")
        if b%2: a(f"s_add_u32 {t3}, {t3}, {64*1280}")
        for q in range(8):
            a(f"s_add_u32 m0, {S['lw']}, {(b%4)*8192+q*1024}")
            a(f"buffer_load_dwordx4 v{vT+2}, {S['srdW']}, {t3} offen {cfg.get('g5_wflav','nt')} lds")
            a(f"s_add_u32 {t3}, {t3}, {8*1280}")
    if cfg.get("g1_pf",1):
        a(f"s_and_b32 {S['go']}, {sROLE}, 31")
        a(f"s_sub_u32 {S['go']}, {S['go']}, 18")
        a(f"s_lshl_b32 {S['go']}, {S['go']}, 2")
        a(f"s_add_u32 {S['go']}, {S['go']}, {sW}")
        a(f"s_lshr_b32 {s}, {sROLE}, 5")
        a(f"s_sub_u32 {s}, {s}, 4")
        a(f"s_cmp_ge_u32 {S['go']}, 36")
        a("s_cbranch_scc1 L5_npf")
        gemm.prefetch_g1(a,cfg,S['go'],s,(t0,t1,t2,t3),S['srdP'],vT+4,vR)
        a.label("L5_npf")
    if cfg.get("g5_hold",1):
        confirm_mode(a,"L5_c0",vT+4)
        hold(a,"L5_h",vT+4,t2)
    for b in range(4): dma(b)
    for b in range(12):
        a(f"s_waitcnt vmcnt({8*min(3,11-b)})")
        for k2 in range(2):
            for t in range(4):
                for hh in range(2):
                    a(f"ds_read_b64_tr_b16 {wreg(2*b+k2,t,2,2*hh)}, v{vTR+t} offset:{(b%4)*8192+(32*k2+16*hh)*128}")
        a("s_waitcnt lgkmcnt(0)")
        if b+4<12: dma(b+4)
    if cfg.get("rec"): cfg["rec"](a,1)
    confirm_mode(a,"L5_cm",vT)
    a("s_barrier")
    a(f"v_and_b32 v{vT}, 15, v0")
    a(f"v_lshrrev_b32 v{vT+1}, 4, v0")
    a(f"v_mul_u32_u24 v{vT+2}, 2560, v{vT}")
    a(f"v_lshl_add_u32 v{vOUT}, v{vT+1}, 3, v{vT+2}")
    a(f"v_and_b32 v{vT}, 7, v0")
    a(f"v_lshlrev_b32 v{vFL}, 2, v{vT}")
    a(f"s_mul_i32 {t0}, {S['th']}, {16*2560}")
    a(f"s_lshl_b32 {t1}, {S['cg']}, 7")
    a(f"s_add_u32 {t0}, {t0}, {t1}")
    a(f"s_lshl_b32 {t1}, {sW}, 5")
    a(f"s_add_u32 {S['out']}, {t0}, {t1}")
    a(f"s_lshl_b32 {t0}, {S['th']}, 8")
    a(f"s_lshl_b32 {t1}, {S['kq']}, 5")
    a(f"s_add_u32 {t0}, {t0}, {t1}")
    a(f"s_add_u32 {t0}, {t0}, {sXB}")
    a(f"s_add_u32 {S['flag']}, {t0}, {F_O}")
    a(f"s_mul_i32 {t0}, {S['th']}, {192*1024}")
    a(f"s_mul_i32 {t1}, {S['kq']}, {24*1024}")
    a(f"s_add_u32 {t0}, {t0}, {t1}")
    a(f"s_add_u32 {S['src']}, {t0}, {WS_O}")
    a(f"s_and_b32 {t1}, {sW}, 1")
    a(f"s_lshl_b32 {t1}, {t1}, 10")
    a(f"s_add_u32 {t1}, {t1}, {sXB}")
    a(f"s_add_u32 {t1}, {t1}, {X_G5}")
    a(f"s_lshl_b32 {t0}, {S['id']}, 13")
    a(f"s_add_u32 {S['xw']}, {t0}, {t1}")
    a(f"s_xor_b32 {t0}, {t0}, 8192")
    a(f"s_add_u32 {S['xr']}, {t0}, {t1}")
    a(f"s_mov_b32 {s}, 0")
    a(f"s_mov_b32 {S['par']}, 0")
    ldf=f"buffer_load_dword v{vT}, v{vFL}, {sWS}, {S['flag']} offen sc1"
    def ld(k,base,first):
        o=[]
        if k%4==0: o.append(f"s_add_u32 {t3}, {base}, {G[(first+k)//4]}")
        o.append(f"buffer_load_dwordx4 {vr(vR+4*k,4)}, v{vL16}, {sWS}, {t3} offen offset:{(k%4)*1024} sc1")
        return o
    def mm(ks):
        return [f"v_mfma_f32_16x16x32_bf16 {vr(vACC+4*t,4)}, {wreg(ks,t)}, {vr(vR+4*(ks%NR),4)}, {vr(vACC+4*t,4) if ks else 0}" for t in range(4)]
    a.label("L5_wait")
    a(ldf)
    emit(a,tmo())
    a("s_waitcnt vmcnt(0)")
    a(f"v_cmp_ge_u32 vcc, {s}, v{vT}")
    a("s_cbranch_vccz L5_prime")
    a("s_sleep 1")
    a("s_branch L5_wait")
    a.label("L5_prime")
    for k in range(NR): emit(a,ld(k,S['src'],0))
    a.label("L5_unit")
    a(ldf)
    for k in range(NR):
        a(f"s_waitcnt vmcnt({NR})")
        emit(a,mm(k)); emit(a,ld(k,S['src'],NR))
    a(f"s_add_u32 {t0}, {s}, 1")
    a(f"s_add_u32 {S['nsrc']}, {S['src']}, {SEG_STRIDE}")
    a(f"s_waitcnt vmcnt({NR})")
    a(f"v_cmp_ge_u32 vcc, {t0}, v{vT}")
    a("s_cbranch_vccnz L5_dry")
    for k in range(NR):
        a(f"s_waitcnt vmcnt({NR-1})")
        emit(a,mm(NR+k)); emit(a,ld(k,S['nsrc'],0))
    a(f"s_mov_b32 {S['go']}, 1")
    a("s_branch L5_red")
    a.label("L5_dry")
    for k in range(NR):
        a(f"s_waitcnt vmcnt({NR-1-k})")
        emit(a,mm(NR+k))
    a(f"s_mov_b32 {S['go']}, 0")
    a.label("L5_red")
    a(f"s_lshl_b32 {t0}, {sW}, 12")
    a(f"s_add_u32 {t0}, {t0}, {S['par']}")
    a(f"v_add_u32 v{vT+1}, {t0}, v{vL16}")
    a(f"s_lshl_b32 {t0}, {sW}, 10")
    a(f"s_add_u32 {t0}, {t0}, {S['par']}")
    a(f"v_add_u32 v{vT+2}, {t0}, v{vL16}")
    for t in range(4): a(f"ds_write_b128 v{vT+1}, {vr(vACC+4*t,4)} offset:{t*1024}")
    a(f"s_and_b32 {t0}, {s}, 3")
    a(f"s_lshl_b32 {t0}, {t0}, 11")
    a(f"s_bfe_u32 {t1}, {s}, 0x10002")
    a("s_waitcnt lgkmcnt(0)")
    a("s_barrier")
    a(";AUTOLGKM_ON")
    for w in range(4): a(f"ds_read_b128 {vr(vRED+4*w,4)}, v{vT+2} offset:{w*4096}")
    for w in range(1,4):
        for r in (0,2): a(f"v_pk_add_f32 {vr(vRED+r,2)}, {vr(vRED+r,2)}, {vr(vRED+4*w+r,2)}")
    a(";AUTOLGKM_OFF")
    a(f"s_lshr_b32 {t2}, {sW}, 1")
    a(f"s_cmp_eq_u32 {t2}, {S['kh']}")
    a("s_cbranch_scc1 L5_fin")
    a(f"s_add_u32 {t0}, {t0}, {S['xw']}")
    a(f"v_and_or_b32 v{vRED}, v{vRED}, -2, {t1}")
    a(f"s_cmp_eq_u32 {sMODE}, 0")
    a("s_cbranch_scc0 L5_sg")
    a(f"buffer_store_dwordx4 {vr(vRED,4)}, v{vL16}, {sWS}, {t0} offen")
    a("s_branch L5_next")
    a.label("L5_sg")
    a(f"buffer_store_dwordx4 {vr(vRED,4)}, v{vL16}, {sWS}, {t0} offen sc1")
    a("s_branch L5_next")
    a.label("L5_fin")
    a(f"s_add_u32 {t0}, {t0}, {S['xr']}")
    a.label("L5_px")
    a(f"buffer_load_dwordx4 {vr(vRED+4,4)}, v{vL16}, {sWS}, {t0} offen sc1")
    emit(a,tmo())
    a("s_waitcnt vmcnt(0)")
    a(f"v_xor_b32 v{vT+1}, {t1}, v{vRED+4}")
    a(f"v_and_b32 v{vT+1}, 1, v{vT+1}")
    a(f"v_cmp_ne_u32 vcc, 0, v{vT+1}")
    a("s_cbranch_vccnz L5_px")
    for r in (0,2): a(f"v_pk_add_f32 {vr(vRED+r,2)}, {vr(vRED+r,2)}, {vr(vRED+4+r,2)}")
    for k in range(2): a(f"v_cvt_pk_bf16_f32 v{vT+4+k}, v{vRED+2*k}, v{vRED+2*k+1}")
    a(f"buffer_store_dwordx2 {vr(vT+4,2)}, v{vOUT}, {S['srdO']}, {S['out']} offen")
    a.label("L5_next")
    a(f"s_xor_b32 {S['par']}, {S['par']}, 16384")
    a(f"s_add_u32 {S['out']}, {S['out']}, {32*2560}")
    a(f"s_mov_b32 {S['src']}, {S['nsrc']}")
    a(f"s_add_u32 {s}, {s}, 1")
    a(f"s_cmp_eq_u32 {S['go']}, 1")
    a("s_cbranch_scc1 L5_unit")
    a(f"s_cmp_lt_u32 {s}, 64")
    a("s_cbranch_scc1 L5_wait")
    if cfg.get("rec"): cfg["rec"](a,3)
    a("s_endpgm")
```

```python
from common import *
XSLOT=40960
vL16=1; vX=2; vXOFF=3; vOUT=4; vZ=5; vTR=6
vT=10; vXR=15; vXR1=112; vXR2=113
vF=16
vACC=48
def wreg(ks,t):
    i=(ks*4+t)*4
    return ar(i,4) if i<256 else vr(192+i-256,4)
def wreg2(ks,t,hh):
    i=(ks*4+t)*4+2*hh
    return ar(i,2) if i<256 else vr(192+i-256,2)
def gemm_sregs():
    al=SAlloc(S_FIRST,83); S={}
    for n in ("srdW","srdX","srdO"): S[n]=al(n,4)
    for n in ("wstr","wcol","perm","xb","s0","s1","out","ostep","d0","d1","d2","d3","flag","vmode","phase","wflav",
              "s","t0","t1","t2","t3","slot","xw","lw","idx","sto","lst","wo","w8"): S[n]=al(n)
    return S

def gen_gemm(a,S,cfg,after_prologue,at_end):
    t0,t1,t2,t3=S["t0"],S["t1"],S["t2"],S["t3"]
    a.label("Lg_start")
    a(f"v_lshlrev_b32 v{vL16}, 4, v0")
    a(f"v_mov_b32 v{vZ}, 0")
    a(f"v_lshrrev_b32 v{vT}, 3, v0")
    a(f"v_and_b32 v{vT+1}, 7, v0")
    a(f"v_xor_b32 v{vT+1}, v{vT+1}, v{vT}")
    a(f"v_mul_lo_u32 v{vT}, v{vT}, {S['wstr']}")
    a(f"v_lshl_add_u32 v{vX}, v{vT+1}, 4, v{vT}")
    a(f"v_lshrrev_b32 v{vT}, 4, v0")
    a(f"v_bfe_u32 v{vT+1}, v0, 2, 2")
    a(f"v_and_b32 v{vT+2}, 3, v0")
    a(f"v_lshl_add_u32 v{vT}, v{vT}, 3, v{vT+1}")
    a(f"s_lshl_b32 {S['lst']}, {sW}, 14")
    a(f"s_add_u32 {S['lst']}, {S['lst']}, {2*XSLOT}")
    a(f"v_lshl_add_u32 v{vT}, v{vT}, 7, {S['lst']}")
    a(f"s_cmp_eq_u32 {S['perm']}, 0")
    a(f"s_cselect_b64 vcc, -1, 0")
    for p in range(2):
        for u in range(2):
            a(f"v_lshrrev_b32 v{vT+3}, 1, v{vT+2}")
            a(f"v_add_u32 v{vT+3}, {2*u}, v{vT+3}")
            a(f"v_cndmask_b32 v{vT+3}, v{vT+2}, v{vT+3}, vcc")
            a(f"v_add_u32 v{vT+3}, {4*p}, v{vT+3}")
            a(f"v_xor_b32 v{vT+3}, v{vT+3}, v{vT+1}")
            a(f"v_lshl_add_u32 v{vT+3}, v{vT+3}, 4, v{vT}")
            a(f"v_and_b32 v{vT+4}, 1, v{vT+2}")
            a(f"v_cndmask_b32 v{vT+4}, {u}, v{vT+4}, vcc")
            a(f"v_lshl_add_u32 v{vTR+2*p+u}, v{vT+4}, 3, v{vT+3}")
    a(f"s_and_b32 {t0}, {sW}, 1")
    a(f"s_lshr_b32 {t1}, {sW}, 1")
    a(f"s_lshl_b32 {t2}, {t1}, 2")
    a(f"v_lshrrev_b32 v{vT}, 4, v0")
    a(f"v_add_u32 v{vT+1}, {t2}, v{vT}")
    a(f"v_and_b32 v{vT+2}, 7, v0")
    a(f"v_xor_b32 v{vT+1}, v{vT+1}, v{vT+2}")
    a(f"v_lshrrev_b32 v{vT+2}, 3, v0")
    a(f"v_mul_u32_u24 v{vT+2}, 1280, v{vT+2}")
    a(f"v_lshl_add_u32 v{vXOFF}, v{vT+1}, 4, v{vT+2}")
    a(f"v_and_b32 v{vT+1}, 15, v0")
    a(f"v_lshrrev_b32 v{vT+2}, 1, v{vT+1}")
    a(f"v_xor_b32 v{vT+2}, v{vT+2}, v{vT}")
    a(f"v_lshlrev_b32 v{vT+1}, 7, v{vT+1}")
    a(f"v_lshl_add_u32 v{vXR}, v{vT+2}, 4, v{vT+1}")
    a(f"s_lshl_b32 {t2}, {t0}, 1")
    a(f"s_add_u32 {t2}, {t2}, {t1}")
    a(f"s_lshl_b32 {S['lw']}, {t2}, 10")
    a(f"s_mul_i32 {t2}, {t2}, 10240")
    a(f"s_add_u32 {S['xw']}, {t2}, {S['xb']}")
    def xdma(seg,slot):
        o=[f"s_sub_u32 {t0}, {S['s1']}, 1", f"s_min_u32 {t0}, {t0}, {seg}", f"s_mul_i32 {t0}, {t0}, {XSLOT}", f"s_add_u32 {t0}, {t0}, {S['xw']}",
           f"s_add_u32 {t1}, {slot}, {S['lw']}"]
        for k in range(10):
            o+=[f"s_add_u32 m0, {t1}, {k*(4096-128)}", f"buffer_load_dwordx4 v{vXOFF}, {S['srdX']}, {t0} offen offset:{k*128} {cfg.get('xflav','sc1')} lds"]
        return o
    s=S["s"]
    a(f"s_mov_b32 {s}, {S['s0']}")
    a(f"s_mov_b32 {S['slot']}, 0")
    def xfirst():
        emit(a,xdma(s,S['slot']))
        a(f"s_add_u32 {t2}, {s}, 1")
        a(f"s_mov_b32 {t3}, {XSLOT}")
        emit(a,xdma(t2,t3))
    a(f"s_lshl_b32 {S['w8']}, {S['wstr']}, 3")
    a(f"s_mov_b32 {S['wo']}, {S['wcol']}")
    wfl=cfg.get("g1_wflav","nt")
    def dma(b):
        for q in range(8):
            a(f"s_add_u32 m0, {S['lst']}, {(b%2)*8192+q*1024}")
            a(f"buffer_load_dwordx4 v{vX}, {S['srdW']}, {S['wo']} offen {wfl} lds")
            a(f"s_add_u32 {S['wo']}, {S['wo']}, {S['w8']}")
    accf=lambda vm,par,t,tt: vACC+32*par+((t*2+tt) if vm else ((t>>1)*4+tt*2+(t&1)))*4
    rdf=lambda f: f"ds_read_b128 {vr(vF+4*(f%8),4)}, v{vXR2 if (f>>1)&1 else vXR1} offset:{(f>>2)*4096+(f&1)*2048}"
    def mmf(vm,par,f,t):
        ks,tt=f>>1,f&1
        W=wreg(ks,t); X=vr(vF+4*(f%8),4); D=vr(accf(vm,par,t,tt),4)
        return f"v_mfma_f32_16x16x32_bf16 {D}, {X if vm else W}, {W if vm else X}, {D if ks else 0}"
    a(f"v_mov_b32 v{vXR1}, v{vXR}")
    a(f"v_xor_b32 v{vXR2}, 64, v{vXR}")
    a(f"s_cmp_eq_u32 {S['phase']}, 3")
    a("s_cbranch_scc1 Lg_nx0")
    emit(a,xdma(s,S['slot']))
    a.label("Lg_nx0")
    for b in range(2): dma(b)
    for b in range(10):
        a(f"s_waitcnt vmcnt({8*min(1,9-b)})")
        if b==0: a("s_barrier")
        for k2 in range(2):
            for t in range(4):
                for hh in range(2):
                    p,u=t>>1,t&1
                    a(f"ds_read_b64_tr_b16 {wreg2(2*b+k2,t,hh)}, v{vTR+2*(p^hh)+u} offset:{(b%2)*8192+(32*k2+4*hh)*128}")
        for f in range(4*b,4*b+4): a(rdf(f))
        a("s_waitcnt lgkmcnt(0)")
        if b==7:
            a(f"s_cmp_eq_u32 {S['phase']}, 3")
            a("s_cbranch_scc1 Lg_nx")
            a(f"s_add_u32 {t2}, {s}, 1")
            a(f"s_mov_b32 {t3}, {XSLOT}")
            emit(a,xdma(t2,t3))
            a.label("Lg_nx")
        if b+2<10: dma(b+2)
        a(f"s_cmp_eq_u32 {S['vmode']}, 1")
        a(f"s_cbranch_scc1 Lg_pv{b}")
        for f in range(4*b,4*b+4):
            for t in range(4): a(mmf(0,1,f,t))
        a(f"s_branch Lg_px{b}")
        a.label(f"Lg_pv{b}")
        for f in range(4*b,4*b+4):
            for t in range(4): a(mmf(1,1,f,t))
        a.label(f"Lg_px{b}")
    def late():
        xfirst()
        a(f"s_mov_b32 {S['sto']}, {OOB}")
        a("s_waitcnt vmcnt(10)")
        a("s_branch Lg_R0")
    after_prologue(a,late)
    a(f"s_mov_b32 {S['sto']}, {S['out']}")
    a(f"s_cmp_eq_u32 {S['vmode']}, 1")
    a("s_cbranch_scc1 Lg_Vf")
    a(f"s_cmp_eq_u32 {S['vmode']}, 2")
    a("s_cbranch_scc1 Lg_Rf")
    for nm,vm,ofl in (("Lg_K",0,"sc1"),("Lg_V",1,"sc1"),("Lg_R",0,"")):
        def epi(par):
            o=[]
            for i in range(4):
                A=vACC+32*par+8*i
                o+=[f"v_cvt_pk_bf16_f32 v{A+k}, v{A+2*k}, v{A+2*k+1}" for k in range(4)]
                o+=[f"s_add_u32 {t3}, {S['sto']}, {S['d%d'%i]}", f"buffer_store_dwordx4 {vr(A,4)}, v{vOUT}, {S['srdO']}, {t3} offen {ofl}"]
            return o
        flagst=[f"v_mov_b32 v{vT}, {s}", f"buffer_store_dword v{vT}, v{vZ}, {sWS}, {S['flag']} offen sc1"]
        a.label(f"{nm}f")
        emit(a,epi(1))
        a("s_barrier")
        a(f"s_add_u32 {t2}, {s}, 2")
        a(f"s_mov_b32 {t3}, {2*XSLOT}")
        emit(a,xdma(t2,t3))
        a(f"s_add_u32 {s}, {s}, 1")
        a(f"s_mov_b32 {S['slot']}, {XSLOT}")
        a(f"s_mov_b32 {S['sto']}, {OOB}")
        a("s_waitcnt vmcnt(10)")
        emit(a,flagst)
        for par in range(2):
            a.label(f"{nm}{par}")
            a(";AUTOLGKM_ON")
            a(f"v_add_u32 v{vXR1}, {S['slot']}, v{vXR}")
            a(f"v_xor_b32 v{vXR2}, 64, v{vXR1}")
            a("s_barrier")
            for f in range(6): a(rdf(f))
            fill=[f"s_sub_u32 {t2}, {S['slot']}, {XSLOT}", f"s_cselect_b32 {S['idx']}, {2*XSLOT}, {t2}", f"s_add_u32 {t2}, {s}, 2"]
            fill+=epi(par^1)+xdma(t2,S['idx'])
            body=[]; k=0; hold=0; nd=0
            for i in range(160):
                f,t=i>>2,i&3
                body.append(mmf(vm,par,f,t))
                if t==3 and f+6<40: body.append(rdf(f+6))
                if f==cfg.get('g1_flagat',28) and t==0:
                    assert not any("buffer_store" in x for x in fill[k:])
                    body+=[f"s_waitcnt vmcnt({nd})"]+flagst
                elif i>=2 and t!=3 and i>=hold:
                    for _ in range(2):
                        if k<len(fill):
                            body.append(fill[k]); k+=1
                            if "m0" in fill[k-1]: break
                            if "buffer_load" in fill[k-1]: nd+=1
                            if "buffer_" in fill[k-1]: hold=i+6; break
            assert k==len(fill)
            emit(a,body)
            a(";AUTOLGKM_OFF")
            a(f"s_sub_u32 {t0}, {s}, {S['s0']}")
            a(f"s_mul_i32 {t0}, {t0}, {S['ostep']}")
            a(f"s_add_u32 {S['sto']}, {t0}, {S['out']}")
            a(f"s_add_u32 {S['slot']}, {S['slot']}, {XSLOT}")
            a(f"s_cmp_eq_u32 {S['slot']}, {3*XSLOT}")
            a(f"s_cselect_b32 {S['slot']}, 0, {S['slot']}")
            a(f"s_add_u32 {s}, {s}, 1")
            a(f"s_cmp_lt_u32 {s}, {S['s1']}")
            if par==0: a(f"s_cbranch_scc0 {nm}e0")
            else: a(f"s_cbranch_scc1 {nm}0")
        for par in (1,0):
            a.label(f"{nm}e{par}")
            emit(a,epi(par))
            a("s_branch Lg_end")
    a.label("Lg_end")
    a("s_waitcnt vmcnt(0)")
    a(f"v_mov_b32 v{vT}, {s}")
    a(f"buffer_store_dword v{vT}, v{vZ}, {sWS}, {S['flag']} offen sc1")
    at_end(a)

def setup_g1(a,S):
    t0,t1,t2,t3=S["t0"],S["t1"],S["t2"],S["t3"]
    a(f"s_mul_i32 {t0}, {S['idx']}, 2731")
    a(f"s_lshr_b32 {t0}, {t0}, 16")
    a(f"s_mul_i32 {t1}, {t0}, 24")
    a(f"s_sub_u32 {t1}, {S['idx']}, {t1}")
    a(f"s_lshl_b32 {t1}, {t1}, 2")
    a(f"s_add_u32 {t1}, {t1}, {sW}")
    a(f"s_add_u32 {t0}, {t0}, 1")
    a(f"s_cmp_eq_u32 {t0}, 3")
    a(f"s_cselect_b32 {t0}, 0, {t0}")
    b=lo(S['srdW'])
    a(f"s_load_dwordx4 s[88:91], s[0:1], 16")
    a(f"s_load_dwordx2 s[92:93], s[0:1], 32")
    srd(a,S['srdX'],0,2621440)
    a("s_waitcnt lgkmcnt(0)")
    a(f"s_cmp_eq_u32 {t0}, 1")
    a(f"s_cselect_b64 {sr(b,2)}, s[90:91], s[88:89]")
    a(f"s_cmp_eq_u32 {t0}, 2")
    a(f"s_cselect_b64 {sr(b,2)}, s[92:93], {sr(b,2)}")
    a(f"s_cselect_b32 {S['vmode']}, 1, 0")
    a(f"s_mov_b32 s{b+2}, 7864320")
    a(f"s_mov_b32 s{b+3}, 0x20000")
    o=lo(S['srdO'])
    a(f"s_mov_b64 {sr(o,2)}, s[4:5]")
    a(f"s_mov_b32 s{o+2}, {WS_BYTES}")
    a(f"s_mov_b32 s{o+3}, 0x20000")
    a(f"s_mov_b32 {S['wstr']}, 12288")
    a(f"s_lshl_b32 {S['wcol']}, {t1}, 7")
    a(f"s_mov_b32 {S['perm']}, 0")
    a(f"s_mov_b32 {S['xb']}, 0")
    a(f"s_mov_b32 {S['s0']}, 0")
    a(f"s_mov_b32 {S['s1']}, 64")
    a(f"s_mul_i32 {t2}, {t0}, {WS_K-WS_Q}")
    a(f"s_lshl_b32 {t3}, {t1}, 12")
    a(f"s_add_u32 {S['out']}, {t2}, {t3}")
    a(f"s_mov_b32 {S['ostep']}, {SEG_STRIDE}")
    for i in range(4): a(f"s_mov_b32 {S['d%d'%i]}, {1024*i}")
    a(f"s_mul_i32 {t2}, {t1}, 21846")
    a(f"s_lshr_b32 {t2}, {t2}, 16")
    a(f"s_mul_i32 {t3}, {t2}, 13")
    a(f"s_add_u32 {t3}, {t3}, {t1}")
    a(f"s_mul_i32 {t0}, {t0}, 3")
    a(f"s_add_u32 {t3}, {t3}, {t0}")
    a(f"s_lshl_b32 {t3}, {t3}, 2")
    a(f"s_add_u32 {t3}, {t3}, {sXB}")
    a(f"s_add_u32 {S['flag']}, {t3}, {F_G1}")
    a(f"s_mov_b32 {S['phase']}, 0")
    a(f"v_lshlrev_b32 v{vOUT}, 4, v0")

def prefetch_g1(a,cfg,task,die,T,srdreg,vt,vdst):
    t0,t1,t2,t3=T; R0=cfg.get("pf_row",384)
    a(f"s_mul_i32 {t0}, {die}, 18")
    a(f"s_lshr_b32 {t1}, {task}, 1")
    a(f"s_add_u32 {t1}, {t1}, {t0}")
    a(f"s_mul_i32 {t0}, {t1}, 2731")
    a(f"s_lshr_b32 {t0}, {t0}, 16")
    a(f"s_mul_i32 {t2}, {t0}, 24")
    a(f"s_sub_u32 {t1}, {t1}, {t2}")
    a(f"s_lshl_b32 {t1}, {t1}, 9")
    a(f"s_and_b32 {t2}, {task}, 1")
    a(f"s_mul_i32 {t2}, {t2}, {2*12288}")
    a(f"s_add_u32 {t1}, {t1}, {t2}")
    a(f"s_add_u32 {t1}, {t1}, {R0*12288}")
    b=lo(srdreg)
    a(f"s_load_dwordx4 s[88:91], s[0:1], 16")
    a(f"s_load_dwordx2 s[92:93], s[0:1], 32")
    a(f"v_lshrrev_b32 v{vt}, 5, v0")
    a(f"v_and_b32 v{vt+1}, 31, v0")
    a(f"v_mul_u32_u24 v{vt}, 12288, v{vt}")
    a(f"v_lshl_add_u32 v{vt}, v{vt+1}, 4, v{vt}")
    a("s_waitcnt lgkmcnt(0)")
    a(f"s_cmp_eq_u32 {t0}, 0")
    a(f"s_cselect_b64 {sr(b,2)}, s[90:91], s[88:89]")
    a(f"s_cmp_eq_u32 {t0}, 1")
    a(f"s_cselect_b64 {sr(b,2)}, s[92:93], {sr(b,2)}")
    a(f"s_mov_b32 s{b+2}, 7864320")
    a(f"s_mov_b32 s{b+3}, 0x20000")
    a(f"s_mov_b32 {t2}, {(640-R0)//32}")
    lab=a.newlabel("Lpf")
    a.label(lab)
    for k in range(8):
        a(f"buffer_load_dwordx4 {vr(vdst+4*k,4)}, v{vt}, {srdreg}, {t1} offen {cfg.get('pf1_flav','nt')}")
        a(f"s_add_u32 {t1}, {t1}, {4*12288}")
    a("s_waitcnt vmcnt(8)")
    a(f"s_sub_u32 {t2}, {t2}, 1")
    a(f"s_cmp_lg_u32 {t2}, 0")
    a(f"s_cbranch_scc1 {lab}")
    a("s_waitcnt vmcnt(0)")
```

```python
WS_Q=0x0000000; WS_K=0x1800000; WS_V=0x3000000; WS_O=0x4800000
SEG_STRIDE=192*2048
NCU=96
WS_BQKV=0x6000000; WS_BO=0x6800000
WS_X=0x7000000
XMODE=0x800000
X_C =0x000000
CCOPY=5*16384; CRING=4*CCOPY
X_G5=0x100000
X_CAL=0x1E0000
X_L =0x200000
LSTR=0xA0000
L_O =0x00000
L_KVM=0x20000
KVM_RING=24*4096
L_AB=0x80000
X_B=X_L; SB=3200
X_D =0x500000
X_FLAG=0x540000
F_G1=X_FLAG+0x0000
F_O =X_FLAG+0x0800
F_A =X_FLAG+0x0C00
F_L =X_FLAG+0x1000
WS_DBG=0x8000000
WS_BYTES=268435456
SENT=0x7F817F81
OOB=0x40000000
D_OVER=1
D_INIT=10
D_B1=18; D_B2=26
D_ABORT=4
D_CNT=41
```

```python
import sys
sys.path.insert(0,"gen")
from common import *
import gemm, g4, g5, bpart, chain4
NAME="concat_heads__memory_aug_recurrent_mem_tr__sliding_local_dilated__prompt"
LDS=163840

DEFAULTS={'n0':3,'dC':30,'dC2':36,'vD':2,'dD':34,'dD2':8,'dG':50,'dG2':10,'pS':28,'dS2':10}
def build(cfg):
    for k,v in DEFAULTS.items(): cfg.setdefault(k,v)
    a=Asm()
    roles=cfg.get("roles","c415b")
    if cfg.get("rec_on"):
        def rec(a,slot):
            a("s_memrealtime s[96:97]")
            a("s_memtime s[98:99]")
            a(f"s_lshl_b32 s100, {sROLE}, 5")
            a(f"s_add_u32 s100, s100, {WS_DBG+0x20000+slot*4}")
            a("s_waitcnt lgkmcnt(0)" if slot<3 else "s_waitcnt vmcnt(0) lgkmcnt(0)")
            a("v_mov_b32 v122, s96")
            a(f"buffer_store_dword v122, off, {sWS}, s100")
            a("v_mov_b32 v123, s98")
            a(f"buffer_store_dword v123, off, {sWS}, s100 offset:16")
            if slot==0:
                a("v_mov_b32 v124, s94")
                a("s_add_u32 s100, s100, 0x4000")
                a(f"buffer_store_dword v124, off, {sWS}, s100")
            if slot==3 and cfg.get("count") and cfg.get("_inchain"):
                a(f"s_lshl_b32 s100, {sROLE}, 2")
                a(f"s_add_u32 s100, s100, {sW}")
                a(f"s_lshl_b32 s100, s100, 4")
                a(f"s_add_u32 s100, s100, {WS_DBG+0x30000}")
                for i,n in enumerate(("nA","nB","nC","nD")): a(f"v_mov_b32 v{20+i}, {cfg['chainS'][n]}")
                a(f"buffer_store_dwordx4 v[20:23], off, {sWS}, s100")
        cfg["rec"]=rec
    if cfg.get("dbgrec"):
        cfg["rec_on"]=True
        slots={("d",0):2,("c",1):3,("c",2):5,("c",3):6,("4",3):7,("g",1):9,("g",3):12,("5",1):13,("5",3):14,("b",2):15}
        def rec(a,slot):
            k=(cfg.get("_role","d"),slot)
            if k not in slots: return
            lab=a.newlabel("Lrec")
            a(f"s_cmp_eq_u32 {sW}, 0")
            a(f"s_cbranch_scc0 {lab}")
            if slot==0:
                a(f"s_and_b32 s96, {sROLE}, 15")
                a(f"s_cbranch_scc1 {lab}")
                a("s_not_b32 s96, s94")
            else:
                a("s_memrealtime s[96:97]")
                a("s_waitcnt vmcnt(0) lgkmcnt(0)")
            a(f"v_mov_b32 v122, {4*slots[k]}")
            a("v_mov_b32 v123, s96")
            a("s_mov_b64 exec, 1")
            a(f"global_atomic_umax v122, v123, {sDBG}")
            a("s_mov_b64 exec, -1")
            a.label(lab)
        cfg["rec"]=rec
    a("s_cmp_ge_u32 s2, 256")
    a("s_cbranch_scc1 L_exit")
    if cfg.get("rec_on"): a("s_memrealtime s[94:95]")
    a("s_load_dwordx2 s[4:5], s[0:1], 96")
    a(f"s_load_dwordx2 {sDBG}, s[0:1], 88")
    a(f"s_mov_b32 s6, {WS_BYTES}")
    a("s_mov_b32 s7, 0x20000")
    a("v_lshrrev_b32 v1, 6, v0")
    a("v_and_b32 v0, 63, v0")
    a(f"v_readfirstlane_b32 {sW}, v1")
    a("s_getreg_b32 s16, hwreg(HW_REG_XCC_ID)")
    a("s_and_b32 s16, s16, 15")
    a(f"s_mov_b32 {sTMO}, {cfg.get('timeout',300000)}")
    a(f"s_mov_b32 {sMODE}, 0")
    a(f"v_mov_b32 v5, {LDS-4}")
    a(f"s_cmp_eq_u32 {sW}, 0")
    a("s_waitcnt lgkmcnt(0)")
    a("s_cbranch_scc0 L_t1")
    a("s_lshl_b32 s17, s16, 5")
    a("s_cmp_ge_u32 s16, 8")
    a(f"s_cselect_b32 s17, {4*D_OVER}, s17")
    a("v_mov_b32 v1, s17")
    a("v_mov_b32 v2, 1")
    a("s_mov_b64 exec, 1")
    a(f"global_atomic_add v3, v1, v2, {sDBG} sc0")
    a("s_waitcnt vmcnt(0)")
    a("ds_write_b32 v5, v3")
    a("s_waitcnt lgkmcnt(0)")
    a("s_mov_b64 exec, -1")
    a.label("L_t1")
    a("s_barrier")
    a("ds_read_b32 v3, v5")
    a("s_waitcnt lgkmcnt(0)")
    a("v_readfirstlane_b32 s17, v3")
    a(f"s_lshl_b32 {sROLE}, s16, 5")
    a(f"s_add_u32 {sROLE}, {sROLE}, s17")
    a("s_cmp_ge_u32 s17, 32")
    a("s_cbranch_scc1 L_generic")
    a("s_cmp_ge_u32 s16, 8")
    a("s_cbranch_scc1 L_generic")
    if cfg.get("force_generic")==1: a("s_branch L_generic")
    a.label("L_dispatch")
    if cfg.get("rec"): cfg["rec"](a,0)
    a(f"s_mul_i32 {sXB}, {sMODE}, {XMODE}")
    a(f"s_add_u32 {sXB}, {sXB}, {WS_X}")
    a(f"s_and_b32 s17, {sROLE}, 31")
    a(f"s_cmp_ge_u32 {sROLE}, 128")
    a("s_cbranch_scc1 L_side")
    a("s_cmp_lt_u32 s17, 24")
    a(f"s_cbranch_scc1 {'Lc_start' if 'c' in roles else 'L_exit'}")
    a(f"s_branch {'L4_start' if '4' in roles else 'L_exit'}")
    a.label("L_side")
    a("s_cmp_lt_u32 s17, 18")
    a(f"s_cbranch_scc1 {'L1_start' if '1' in roles else 'L_exit'}")
    a("s_cmp_lt_u32 s17, 28")
    a(f"s_cbranch_scc1 {'L5_start' if '5' in roles else 'L_exit'}")
    a(f"s_branch {'Lb_start' if 'b' in roles else 'L_exit'}")
    a.label("L_generic")
    a("s_waitcnt vmcnt(0) lgkmcnt(0)")
    a("s_barrier")
    a(f"s_mov_b32 {sMODE}, 1")
    a(f"s_mov_b32 {sROLE}, s2")
    a("v_mbcnt_lo_u32_b32 v0, -1, 0")
    a("v_mbcnt_hi_u32_b32 v0, -1, v0")
    a("s_branch L_dispatch")
    a.label("L_abort")
    dbg_add(a,D_ABORT,1,0)
    a(f"v_mov_b32 v1, {sROLE}")
    a(f"global_store_dword v0, v1, {sDBG} offset:4")
    a.label("L_exit")
    a("s_endpgm")
    loop=None
    if 'c' in roles:
        cfg["_role"]="c"
        loop=chain4.gen_chain(a,cfg)
        cfg["_inchain"]=True
        for w in range(4): loop(cfg.get("modes",(0,1))[0],w)
        cfg["_inchain"]=False
    cfg["_role"]="4"
    if '4' in roles: g4.gen_g4(a,cfg)
    cfg["_role"]="g"
    if '1' in roles or 'b' in roles:
        S=gemm.gemm_sregs()
        a.label("Lb_start")
        if cfg.get("b_hold",0):
            confirm_mode(a,"Lb_c0",10)
            hold(a,"Lb_h",10,S["t2"])
        bpart.setup_b(a,S,1)
        a("s_branch Lg_start")
        a.label("L1_start")
        a(f"s_lshr_b32 {S['t0']}, {sROLE}, 5")
        a(f"s_sub_u32 {S['t0']}, {S['t0']}, 4")
        a(f"s_mul_i32 {S['t0']}, {S['t0']}, 18")
        a(f"s_add_u32 {S['idx']}, {S['t0']}, s17")
        gemm.setup_g1(a,S)
        def after(a,xfirst):
            a(f"s_cmp_eq_u32 {S['phase']}, 3")
            a("s_cbranch_scc1 Lg_w3")
            if cfg.get("rec"): cfg["rec"](a,1)
            confirm_mode(a,"Lg_cm",10)
            a("s_branch Lg_w0")
            a.label("Lg_w3")
            dbg_wait(a,D_B2,16,10,"Lg_b2")
            xfirst()
            a.label("Lg_w0")
        def at_end(a):
            a(f"s_cmp_eq_u32 {S['phase']}, 1")
            a("s_cbranch_scc1 Lb_p2")
            if cfg.get("rec"): cfg["rec"](a,3)
            a("s_endpgm")
        gemm.gen_gemm(a,S,cfg,after,at_end)
        cfg["_role"]="b"
        a.label("Lb_p2")
        def arrive(d,lab):
            a("s_waitcnt vmcnt(0)")
            a("s_barrier")
            a(f"s_cmp_eq_u32 {sW}, 0")
            a(f"s_cbranch_scc0 {lab}")
            a("buffer_wbl2 sc1")
            a("s_waitcnt vmcnt(0)")
            dbg_add(a,d,1,10)
            a.label(lab)
        arrive(D_B1,"Lb_a1")
        if cfg.get("rec"): cfg["rec"](a,1)
        dbg_wait(a,D_B1,16,10,"Lb_w1")
        bpart.gen_battn(a,S)
        arrive(D_B2,"Lb_a2")
        if cfg.get("rec"): cfg["rec"](a,2)
        a(f"s_cmp_eq_u32 {S['wflav']}, 15")
        a("s_cbranch_scc1 L_exit")
        bpart.setup_b(a,S,3)
        a("s_branch Lg_start")
    cfg["_role"]="5"
    if '5' in roles: g5.gen_g5(a,cfg)
    cfg["_role"]="c"
    if loop and len(cfg.get("modes",(0,1)))>1:
        cfg["_inchain"]=True
        for w in range(4): loop(1,w)
    return a.finish(cfg.get("verbose",False))

def full_file(cfg):
    ref=open(f"cdna_kernels/{NAME}.s.ref").read().split("\n")
    head=[l for l in ref if l.startswith(";") and "@launch" not in l and "Override launch" not in l and "grid=ceil" not in l]
    out="\n".join(head)+f"\n; @launch grid=(256,1,1) block=(256,1,1) lds={LDS}\n"
    out+=cfg.get("banner","")
    out+=f""".amdgcn_target "amdgcn-amd-amdhsa--gfx950"
.text
.globl {NAME}_kernel
.p2align 8
.type {NAME}_kernel,@function
{NAME}_kernel:
"""
    out+=build(cfg)
    out+=f""".section .rodata,"a"
.p2align 6
.amdhsa_kernel {NAME}_kernel
  .amdhsa_next_free_vgpr 512
  .amdhsa_next_free_sgpr 102
  .amdhsa_accum_offset 256
  .amdhsa_group_segment_fixed_size 0
  .amdhsa_kernarg_size 104
  .amdhsa_user_sgpr_count 2
  .amdhsa_user_sgpr_kernarg_segment_ptr 1
  .amdhsa_system_sgpr_workgroup_id_x 1
.end_amdhsa_kernel
"""
    return out

if __name__=="__main__":
    cfg={"verbose":True}
    if len(sys.argv)>2: cfg.update(eval(sys.argv[2]))
    path=sys.argv[1] if len(sys.argv)>1 else f"cdna_kernels/{NAME}.s"
    open(path,"w").write(full_file(cfg))
    print("wrote",path)
```
